```python
import torch

def _softmax(x, axis=-1):
    return torch.softmax(x, dim=axis)
def _gelu(x):
    return torch.nn.functional.gelu(x, approximate="tanh")
def _silu(x):
    return torch.nn.functional.silu(x)
def _sigmoid(x):
    return torch.sigmoid(x)
def _layernorm(x, axis=-1, eps=1e-5):
    m = x.mean(dim=axis, keepdim=True)
    v = x.var(dim=axis, keepdim=True, unbiased=False)
    return (x - m) / torch.sqrt(v + eps)
def _scatter_add(tgt, idx, src, axis=0):
    return tgt.clone().index_add_(axis, idx, src)
def _segment_sum(src, seg, n):
    out = torch.zeros((n,) + src.shape[1:], dtype=src.dtype)
    return out.index_add_(0, seg, src)
def _pad(x, pw):
    flat = tuple(v for pair in reversed(pw) for v in pair)
    return torch.nn.functional.pad(x, flat)

kernel_name = 'recurrent_scan__spectral_gfnet__dense_activation_relu__prompt'

def setup_inputs():

    _w = (lambda a: (lambda t: t.to(torch.bfloat16) if t.is_floating_point() else t)(torch.as_tensor(a)))
    def _A_setup():
        B, S, D = 1, 2048, 512
        Df = D // 2 + 1
        return {
            "x": _w((lambda *s: torch.randn(*s, dtype=torch.bfloat16) * 0.05)(B, S, D)),
            "w_r": _w((lambda *s: torch.randn(*s, dtype=torch.bfloat16) * 0.2)(S, Df) * 0.02),
            "w_i": _w((lambda *s: torch.randn(*s, dtype=torch.bfloat16) * 0.2)(S, Df) * 0.02),
        }
    _A_in = _A_setup()

    def _B_setup():
        B, S, D, Dff = 1, 2048, 512, 1376
        return {
            "x": _w((lambda *s: torch.randn(*s, dtype=torch.bfloat16) * 0.05)(B, S, D)),
            "w1": _w((lambda *s: torch.randn(*s, dtype=torch.bfloat16) * 0.1)(D, Dff)),
            "w2": _w((lambda *s: torch.randn(*s, dtype=torch.bfloat16) * 0.1)(Dff, D)),
        }
    _B_in = _B_setup()

    return {
        "A_x": _A_in["x"],
        "A_w_r": _A_in["w_r"],
        "A_w_i": _A_in["w_i"],
        "B_x": _B_in["x"],
        "B_w1": _B_in["w1"],
        "B_w2": _B_in["w2"],
    }

def reference(A_x, A_w_r, A_w_i, B_x, B_w1, B_w2):
    def _A_ref(x, w_r, w_i):
        B, S, D = x.shape
        X = (lambda x, axes=(-2,-1): torch.fft.rfft2(x.float(), dim=axes))(x, axes=(-2, -1))
        W = w_r + 1j * w_i
        X = X * W
        y = (lambda x, s, axes=(-2,-1): torch.fft.irfft2(x, s=s, dim=axes).to(torch.bfloat16))(X, (S, D), axes=(-2, -1))
        return y

    def _B_ref(x, w1, w2):
        h = torch.einsum("bsd,df->bsf", x, w1)
        zero = torch.zeros_like(h)
        h = torch.maximum(h, zero)
        return torch.einsum("bsf,fd->bsd", h, w2)

    x = A_x
    xn = _layernorm(x, axis=-1)
    s = _A_ref(xn, A_w_r, A_w_i)
    g = _silu(_B_ref(xn, B_w1, B_w2))
    return x + s * g
```

```python
import re

def regs_of(tok):
    tok = tok.strip()
    tok = tok.lstrip('-')
    m = re.fullmatch(r'abs\((.*)\)', tok)
    if m: tok = m.group(1)
    m = re.fullmatch(r'\|(.*)\|', tok)
    if m: tok = m.group(1)
    m = re.fullmatch(r'([vsa])(\d+)', tok)
    if m: return {(m.group(1), int(m.group(2)))}
    m = re.fullmatch(r'([vsa])\[(\d+):(\d+)\]', tok)
    if m: return {(m.group(1), i) for i in range(int(m.group(2)), int(m.group(3)) + 1)}
    if tok in ('vcc', 'vcc_lo', 'vcc_hi'): return {('s', 'vcc')}
    if tok in ('exec', 'exec_lo', 'exec_hi'): return {('s', 'exec')}
    if tok == 'm0': return {('s', 'm0')}
    return set()

TRANS = ('v_exp_f32', 'v_log_f32', 'v_rcp_f32', 'v_rsq_f32', 'v_sqrt_f32', 'v_sin_f32', 'v_cos_f32')

class Ins:
    def __init__(self, text):
        self.text = text
        t = text.split(';')[0].strip()
        self.label = t.endswith(':')
        self.directive = t.startswith('.') and not self.label
        self.empty = (t == '')
        self.mn = ''; self.rd = set(); self.wr = set(); self.kind = 'other'
        self.a = self.b = self.c = set(); self.dpp = False
        if self.label or self.directive or self.empty: return
        parts = t.split(None, 1)
        mn = self.mn = parts[0]
        ops = []
        if len(parts) > 1:
            depth = 0; cur = ''
            for ch in parts[1]:
                if ch == '[': depth += 1
                if ch == ']': depth -= 1
                if ch == ',' and depth == 0: ops.append(cur.strip()); cur = ''
                else: cur += ch
            ops.append(cur.strip())
            ops[-1] = ops[-1].split()[0] if ops[-1] else ''
        R = [regs_of(o) for o in ops]
        allr = set().union(*R) if R else set()
        if mn.startswith('v_mfma'):
            self.kind = 'mfma'; self.wr = R[0]; self.a, self.b, self.c = R[1], R[2], R[3]; self.rd = R[1] | R[2] | R[3]
            self.passes = 4 if '16x16x32' in mn else 8
        elif mn.startswith('v_'):
            self.kind = 'valu'; self.dpp = ('_dpp' in mn)
            if mn.startswith('v_cmp'):
                self.wr = R[0]; self.rd = set().union(*R[1:])
            elif mn.startswith('v_permlane'):
                self.wr = allr; self.rd = allr
            elif mn.startswith(('v_readfirstlane', 'v_readlane')):
                self.wr = R[0]; self.rd = set().union(*R[1:])
            elif mn.startswith(('v_add_co', 'v_sub_co', 'v_addc_co')):
                self.wr = R[0] | R[1]; self.rd = set().union(*R[2:])
            elif mn == 'v_nop': pass
            else:
                self.wr = R[0]; self.rd = set().union(*R[1:]) if len(R) > 1 else set()
                if mn.startswith(('v_fmac', 'v_dot2c', 'v_writelane')) or self.dpp: self.rd = self.rd | R[0]
                if self.dpp: self.a = R[1]
        elif mn.startswith('ds_'):
            self.kind = 'ds'
            if mn.startswith('ds_read') or '_rtn' in mn or 'permute' in mn or 'swizzle' in mn:
                self.wr = R[0]; self.rd = set().union(*R[1:])
            else: self.rd = allr
        elif mn.startswith(('buffer_', 'global_')):
            self.kind = 'vmem'; self.lds = bool(re.search(r'\blds\b', t))
            if 'load' in mn and not self.lds:
                self.wr = R[0]; self.rd = set().union(*R[1:])
            else:
                self.rd = allr
                self.wide_store = ('store' in mn and ('x4' in mn or 'x3' in mn))
                self.data = R[0] if mn.startswith('buffer_') else R[1]
            if self.lds: self.rd = self.rd | {('s', 'm0')}
        elif mn.startswith('s_'):
            self.kind = 'salu'
            if mn.startswith(('s_cmp', 's_cbranch', 's_branch', 's_waitcnt', 's_barrier', 's_nop', 's_sleep', 's_setprio', 's_endpgm', 's_bitcmp')):
                self.rd = allr
            else:
                self.wr = R[0] if R else set(); self.rd = set().union(*R[1:]) if len(R) > 1 else set()
    def states(self):
        if self.label or self.directive or self.empty: return 0
        if self.mn == 's_nop': return int(self.text.split(';')[0].split()[1], 0) + 1
        return 1

def V(s): return {r for r in s if r[0] in 'va'}
def S(s): return {r for r in s if r[0] == 's'}

def need(p, c):
    n = 0
    if p.kind == 'valu':
        vw, sw = V(p.wr), S(p.wr)
        if c.kind == 'mfma' and vw & c.rd: n = max(n, 2)
        if c.kind == 'valu':
            if c.dpp and vw & c.a: n = max(n, 2)
            if c.mn.startswith('v_permlane') and vw & c.rd: n = max(n, 2)
            if c.mn.startswith(('v_readfirstlane', 'v_readlane')) and vw & c.rd: n = max(n, 1)
            if p.mn.startswith(TRANS) and vw & c.rd: n = max(n, 1)
            if sw & c.rd: n = max(n, 4 if c.mn.startswith(('v_readlane', 'v_writelane')) else 2)
            if c.mn.startswith('v_cndmask') and ('s', 'vcc') in sw: n = max(n, 2)
            if p.mn.startswith('v_dot2') and vw & (c.rd | c.wr) and c.mn != p.mn: n = max(n, 3)
        if c.kind == 'vmem' and sw & c.rd: n = max(n, 5)
        if c.kind == 'salu' and sw & c.rd: n = max(n, 1)
    if p.kind == 'mfma':
        big = {4: 8, 8: 12}[p.passes]
        if c.kind == 'mfma':
            if p.wr & (c.a | c.b): n = max(n, big)
            if p.wr & c.c and not (p.wr == c.c and p.passes == c.passes): n = max(n, big - 2)
            if p.wr & c.wr and not (p.wr == c.c): n = max(n, big - 2)
        elif c.kind in ('valu', 'ds', 'vmem'):
            if p.wr & (c.rd | c.wr): n = max(n, big)
            if c.kind == 'valu' and p.c & c.wr: n = max(n, p.passes - 1)
    if p.kind == 'salu' and ('s', 'm0') in p.wr and c.kind == 'vmem' and getattr(c, 'lds', False): n = max(n, 1)
    if p.kind == 'vmem' and getattr(p, 'wide_store', False) and p.data & c.wr: n = max(n, 2)
    return n

def pad_hazards(lines):
    out = []; hist = []
    for text in lines:
        c = Ins(text)
        if c.states():
            dist = 0; want = 0
            for p in reversed(hist):
                if dist >= 13: break
                want = max(want, need(p, c) - dist)
                dist += p.states()
            if want > 0:
                nop = Ins(f"s_nop {want-1}")
                out.append(nop.text); hist.append(nop)
            hist.append(c)
            if len(hist) > 40: hist = hist[-20:]
        out.append(text)
    return out

class Prog:
    def __init__(self):
        self.L = []; self.vmq = []; self.dsq = []
    def __call__(self, s):
        for line in s.strip('\n').split('\n'): self.L.append(line.strip())
    def vm(self, s, tag='_'):
        self(s); self.vmq.append(tag)
    def ds(self, s, tag='_'):
        self(s); self.dsq.append(tag)
    def _n(self, q, tags):
        if isinstance(tags, str): tags = [tags]
        idx = [i for i, t in enumerate(q) if t in tags]
        if not idx: return None
        return len(q) - 1 - idx[-1]
    def wait(self, vm=None, ds=None):
        parts = []
        if vm is not None:
            n = 0 if vm == 'all' else self._n(self.vmq, vm)
            if n is not None:
                n = min(n, 63); parts.append(f"vmcnt({n})"); self.vmq = self.vmq[len(self.vmq) - n:] if n else []
        if ds is not None:
            n = 0 if ds == 'all' else self._n(self.dsq, ds)
            if n is not None:
                n = min(n, 15); parts.append(f"lgkmcnt({n})"); self.dsq = self.dsq[len(self.dsq) - n:] if n else []
        if parts: self("s_waitcnt " + " ".join(parts))
```

```python
import sys, struct
from asmtool import Prog, pad_hazards

KN = "recurrent_scan__spectral_gfnet__dense_activation_relu__prompt_kernel"

def fbits(x): return "0x%08x" % struct.unpack("<I", struct.pack("<f", x))[0]
def vr(b, n=1): return f"v{b}" if n == 1 else f"v[{b}:{b+n-1}]"
def sr(b, n=1): return f"s{b}" if n == 1 else f"s[{b}:{b+n-1}]"

FW, FZ, FU, FH = 0, 4096, 8192, 12288
WS_Z, WS_U, WS_W2, WS_H, WS_END = 0x100000, 0x300000, 0x500000, 0x700000, 0x1000000
WS_STAMP = 0xE00000
TILE = 43 * 4096
XN = 0
SLOT0 = 65536
MISC = 151552
SYNC = 163776
CNT_H, CNT_U, WRD_Z, WRD_H, WRD_U, WRD_W2 = 0, 4, 8, 12, 16, 32
W2L_SZ = 28672
VREG = 114688
def slot(c):
    if c < 7: return SLOT0 + 12288 * c
    if c < 12: return XN + 12288 * (c - 7)
    return SLOT0 + 12288 * (c - 12)
SX, SW1, SW2, SWS, SOUT, SDBG, SWW, SH, SW2P, SCODE = 24, 28, 32, 36, 40, 44, 48, 52, 56, 60
sV, sW, sRG1, sJ1, sROT, sRG2, sJ2, sFS, sFN = 64, 65, 66, 67, 68, 69, 70, 71, 72
sHI, sT0, sT1, sT2, sT3, sA, sB = 73, 74, 75, 76, 77, 22, 23
sSTAMP = 78
vL = 1

MFMA = "v_mfma_f32_16x16x32_bf16"
DPP8 = "row_ror:8 row_mask:0xf bank_mask:0xf"

class G(Prog):
    def __init__(self, opt):
        super().__init__(); self.opt = opt; self.nst = 0; self.names = []; self.uid = 0
    def stamp(self, name):
        if not self.opt.get('stamps'): return
        if self.nst >= 11: raise Exception("too many stamps")
        self(f"s_memtime {sr(sSTAMP + 2 + 2 * self.nst, 2)}"); self.nst += 1; self.names.append(name)
    def lab(self, base):
        self.uid += 1; return f"L_{base}_{self.uid}"
    def mfma(self, d, a, b, first=False):
        self(f"{MFMA} {vr(d,4)}, {vr(a,4)}, {vr(b,4)}, {'0' if first else vr(d,4)}")
    def srd(self, d, b, n):
        self(f"s_mov_b32 s{d}, s{b}\ns_mov_b32 s{d+1}, s{b+1}\ns_mov_b32 s{d+2}, {n}\ns_mov_b32 s{d+3}, 0x20000")
    def bar(self): self("s_barrier")

    def trig(self, dcos, dsin, base, step, mults, t, negsin=False):
        for e in range(4):
            for h in range(2):
                m = mults[2 * e + h]
                if m == 0: self(f"v_mov_b32 {vr(t+h)}, {vr(base)}")
                else: self(f"v_fmamk_f32 {vr(t+h)}, {vr(step)}, {fbits(float(m))}, {vr(base)}")
            self(f"v_cos_f32 {vr(t+2)}, {vr(t)}\nv_cos_f32 {vr(t+3)}, {vr(t+1)}")
            if dsin is not None:
                self(f"v_sin_f32 {vr(t+4)}, {vr(t)}\nv_sin_f32 {vr(t+5)}, {vr(t+1)}")
            self(f"v_cvt_pk_bf16_f32 {vr(dcos+e)}, {vr(t+2)}, {vr(t+3)}")
            if dsin is not None:
                n = '-' if negsin else ''
                self(f"v_cvt_pk_bf16_f32 {vr(dsin+e)}, {n}{vr(t+4)}, {n}{vr(t+5)}")

    def spin_global(self, load, reduce, vres, first_issued):
        top, chk, done = self.lab("sp"), self.lab("ck"), self.lab("dn")
        self(f"s_mov_b32 s{sT3}, 0")
        if first_issued: self(f"s_branch {chk}")
        self(f"{top}:")
        self(load)
        self(f"{chk}:")
        self("s_waitcnt vmcnt(0)")
        if reduce: self(reduce)
        self(f"v_cmp_ne_u32 vcc, 1, {vr(vres)}\ns_add_u32 s{sT3}, s{sT3}, 1\ns_nop 0")
        self(f"s_cbranch_vccz {done}\ns_cmp_gt_u32 s{sT3}, 30000\ns_cbranch_scc1 {done}\ns_sleep {self.opt.get('sleep', 2)}\ns_branch {top}\n{done}:")
    def spin_lds(self, off, vaddr, vt):
        top, done = self.lab("ls"), self.lab("ld")
        self(f"s_mov_b32 s{sT3}, 0\n{top}:\nds_read_b32 {vr(vt)}, {vr(vaddr)} offset:{off}\ns_waitcnt lgkmcnt(0)")
        self(f"v_cmp_ne_u32 vcc, 1, {vr(vt)}\ns_add_u32 s{sT3}, s{sT3}, 1\ns_nop 0")
        self(f"s_cbranch_vccz {done}\ns_cmp_gt_u32 s{sT3}, 0x80000\ns_cbranch_scc1 {done}\ns_sleep 1\ns_branch {top}\n{done}:")
        self.dsq = []
    def set_flag(self, soff, vone, base_srd=SWS):
        self(f"s_mov_b64 exec, 1\nbuffer_store_dword {vr(vone)}, off, {sr(base_srd,4)}, {soff} sc1\ns_mov_b64 exec, -1")

    def layernorm(self, R, Fp, t, vaddr, hook=lambda k: None):
        S0, S1, Q0, Q1, RN = t, t + 2, t + 4, t + 6, t + 8
        for i in range(8):
            self.wait(vm=f"x{i}")
            for k in range(4):
                f = Fp + 8 * i + 2 * k
                self(f"v_lshlrev_b32 {vr(f)}, 16, {vr(R+4*i+k)}\nv_and_b32 {vr(f+1)}, s{sHI}, {vr(R+4*i+k)}")
            for k in range(4):
                f = Fp + 8 * i + 2 * k; s = (S0, S1)[k & 1]; q = (Q0, Q1)[k & 1]
                if i == 0 and k < 2:
                    self(f"v_pk_mul_f32 {vr(q,2)}, {vr(f,2)}, {vr(f,2)}")
                elif i == 0:
                    self(f"v_pk_add_f32 {vr(s,2)}, {vr(f-4,2)}, {vr(f,2)}\nv_pk_fma_f32 {vr(q,2)}, {vr(f,2)}, {vr(f,2)}, {vr(q,2)}")
                else:
                    self(f"v_pk_add_f32 {vr(s,2)}, {vr(s,2)}, {vr(f,2)}\nv_pk_fma_f32 {vr(q,2)}, {vr(f,2)}, {vr(f,2)}, {vr(q,2)}")
            hook(i)
        self(f"v_pk_add_f32 {vr(S0,2)}, {vr(S0,2)}, {vr(S1,2)}\nv_pk_add_f32 {vr(Q0,2)}, {vr(Q0,2)}, {vr(Q1,2)}")
        self(f"v_add_f32 {vr(S0)}, {vr(S0)}, {vr(S0+1)}\nv_add_f32 {vr(Q0)}, {vr(Q0)}, {vr(Q0+1)}")
        for mode in ("quad_perm:[1,0,3,2]", "quad_perm:[2,3,0,1]", "row_half_mirror"):
            self(f"v_add_f32_dpp {vr(S0)}, {vr(S0)}, {vr(S0)} {mode} row_mask:0xf bank_mask:0xf")
            self(f"v_add_f32_dpp {vr(Q0)}, {vr(Q0)}, {vr(Q0)} {mode} row_mask:0xf bank_mask:0xf")
        self(f"v_mul_f32 {vr(S0)}, {fbits(1/512)}, {vr(S0)}\nv_mul_f32 {vr(Q0)}, {fbits(1/512)}, {vr(Q0)}")
        self(f"v_fma_f32 {vr(Q0)}, -{vr(S0)}, {vr(S0)}, {vr(Q0)}\nv_max_f32 {vr(Q0)}, 0, {vr(Q0)}")
        self(f"v_add_f32 {vr(Q0)}, {fbits(1e-5)}, {vr(Q0)}\nv_rsq_f32 {vr(RN)}, {vr(Q0)}")
        self(f"v_mul_f32 {vr(RN+1)}, -{vr(S0)}, {vr(RN)}")
        hook(8)
        for i in range(8):
            for k in range(4):
                f = Fp + 8 * i + 2 * k
                self(f"v_pk_fma_f32 {vr(f,2)}, {vr(f,2)}, {vr(RN,2)}, {vr(RN,2)} op_sel:[0,0,1] op_sel_hi:[1,0,1]")
            for k in range(4):
                f = Fp + 8 * i + 2 * k
                self(f"v_cvt_pk_bf16_f32 {vr(R+4*i+k)}, {vr(f)}, {vr(f+1)}")
            self.ds(f"ds_write_b128 {vr(vaddr)}, {vr(R+4*i,4)} offset:{2048*i}")
            hook(9 + i)

    def x_addr(self, voff, vlds, t):
        self(f"""
v_lshrrev_b32 {vr(t)}, 3, v{vL}
v_and_b32 {vr(t+1)}, 7, v{vL}
v_lshlrev_b32 {vr(voff)}, 16, {vr(t)}
v_lshl_or_b32 {vr(voff)}, {vr(t+1)}, 4, {vr(voff)}
v_xor_b32 {vr(t)}, {vr(t)}, {vr(t+1)}
v_lshlrev_b32 {vr(t)}, 4, {vr(t)}
v_lshl_or_b32 {vr(vlds)}, {vr(t+1)}, 8, {vr(t)}
s_lshr_b32 s{sT0}, s{sV}, 1
s_lshl_b32 s{sT0}, s{sT0}, 14
s_and_b32 s{sT1}, s{sV}, 1
s_lshl_b32 s{sT1}, s{sT1}, 7
s_add_u32 s{sT0}, s{sT0}, s{sT1}
v_add_u32 {vr(vlds)}, s{sT0}, {vr(vlds)}
s_lshl_b32 s{sA}, s{sW}, 19
s_lshl_b32 s{sT0}, s{sRG1}, 11
s_add_u32 s{sA}, s{sA}, s{sT0}
s_lshr_b32 s{sT0}, s{sV}, 2
s_lshl_b32 s{sT0}, s{sT0}, 10
s_add_u32 s{sA}, s{sA}, s{sT0}""")
    def x_load(self, i, R, voff):
        self(f"s_add_u32 s{sT0}, s{sROT}, {i}\ns_and_b32 s{sT0}, s{sT0}, 7\ns_lshl_b32 s{sT0}, s{sT0}, 7\ns_add_u32 s{sT0}, s{sT0}, s{sA}")
        self.vm(f"buffer_load_dwordx4 {vr(R+4*i,4)}, {vr(voff)}, {sr(SX,4)}, s{sT0} offen", f"x{i}")

    def final_xload(self, dst, voff, t):
        self(f"""
v_lshrrev_b32 {vr(t)}, 3, v{vL}
v_lshlrev_b32 {vr(voff)}, 16, {vr(t)}
v_bfe_u32 {vr(t)}, v{vL}, 2, 1
v_lshl_or_b32 {vr(voff)}, {vr(t)}, 9, {vr(voff)}
v_and_b32 {vr(t)}, 3, v{vL}
v_lshl_or_b32 {vr(voff)}, {vr(t)}, 4, {vr(voff)}
s_lshl_b32 s{sB}, s{sW}, 19
s_lshl_b32 s{sT0}, s{sRG2}, 11
s_add_u32 s{sB}, s{sB}, s{sT0}
s_lshr_b32 s{sT0}, s{sV}, 2
s_lshl_b32 s{sT0}, s{sT0}, 10
s_add_u32 s{sB}, s{sB}, s{sT0}
s_lshl_b32 s{sT0}, s{sJ2}, 6
s_add_u32 s{sB}, s{sB}, s{sT0}""")
        self.vm(f"buffer_load_dwordx4 {vr(dst,4)}, {vr(voff)}, {sr(SX,4)}, s{sB} offen", "xf")


def prologue(g):
    g(f"""
s_cmp_ge_u32 s2, 256
s_cbranch_scc1 L_end
s_load_dwordx16 s[4:19], s[0:1], 0
s_load_dwordx2 s[20:21], s[0:1], 64""")
    if g.opt.get('stamps'):
        g(f"s_memrealtime {sr(sSTAMP,2)}"); g.stamp("start")
    g(f"""
s_getpc_b64 s[{SCODE}:{SCODE+1}]
L_pc:
s_mov_b32 s{SCODE+2}, L_end-L_pc
s_mov_b32 s{SCODE+3}, 0x20000
v_lshrrev_b32 v2, 6, v0
v_lshlrev_b32 v3, 7, v2
s_lshr_b32 s3, s2, 3
s_lshl_b32 s{sT0}, s3, 10
buffer_load_dword v239, v3, {sr(SCODE,4)}, s{sT0} offen
v_readfirstlane_b32 s{sV}, v2
v_and_b32 v{vL}, 63, v0
s_and_b32 s{sT0}, s2, 3
s_lshl_b32 s{sT0}, s{sT0}, 3
s_bfe_u32 s{sT1}, s2, 0x10002
s_lshl_b32 s{sT1}, s{sT1}, 2
s_and_b32 s{sT2}, s3, 7
s_add_u32 s{sRG1}, s{sT0}, s{sT2}
s_lshr_b32 s{sT3}, s3, 3
s_add_u32 s{sJ1}, s{sT1}, s{sT3}
s_lshl1_add_u32 s{sROT}, s{sT3}, s{sT2}
s_bfe_u32 s{sT2}, s2, 0x10002
s_add_u32 s{sROT}, s{sROT}, s{sT2}
s_and_b32 s{sROT}, s{sROT}, {7 if g.opt.get('rot', 1) else 0}
s_add_u32 s{sRG2}, s{sT0}, s{sT1}
s_and_b32 s{sT2}, s3, 3
s_add_u32 s{sRG2}, s{sRG2}, s{sT2}
s_lshr_b32 s{sJ2}, s3, 2
s_mul_i32 s{sT0}, s{sJ1}, 43
s_lshr_b32 s{sFS}, s{sT0}, 3
s_add_u32 s{sT0}, s{sT0}, 43
s_lshr_b32 s{sT0}, s{sT0}, 3
s_sub_u32 s{sFN}, s{sT0}, s{sFS}
s_mov_b32 s{sHI}, 0xffff0000
s_and_b32 s{sW}, s{sV}, 3
s_cmp_ge_u32 s{sV}, 4
s_cbranch_scc1 L_roleY""")


def srds_common(g):
    g("s_waitcnt lgkmcnt(0)")
    g.srd(SX, 4, 2097152)
def srds_late(g):
    g.srd(SWS, 20, WS_END); g.srd(SOUT, 16, 2097152); g.srd(SDBG, 18, 256)
    g(f"""
s_mul_i32 s{sT0}, s{sJ2}, {TILE}
s_add_u32 s{sT0}, s{sT0}, {WS_W2}
s_add_u32 s{SW2P}, s20, s{sT0}
s_addc_u32 s{SW2P+1}, s21, 0
s_mov_b32 s{SW2P+2}, {TILE}
s_mov_b32 s{SW2P+3}, 0x20000""")

RING = [('B', 0, 4), ('C', 5, 6), ('D', 7, 9), ('D2', 10, 11), ('E1', 12, 13), ('E2', 14, 15)]


def role_x(g):
    o = g.opt
    XK, F, EA, AY, T, TMP = 16, 144, 176, 208, 224, 248
    vQ, vN, vXO, vXL, vONE, vL16, vSY = 2, 3, 4, 5, 6, 7, 8
    vRD = 10
    vB, vS = 14, 15
    g(f"v_lshrrev_b32 v{vQ}, 4, v{vL}\nv_and_b32 v{vN}, 15, v{vL}")
    g.x_addr(vXO, vXL, TMP)
    g(f"""
s_lshl_b32 s{sT0}, s{sJ1}, 5
s_add_u32 s{sT0}, s{sT0}, s{sW}
s_add_u32 s{sT0}, s{sT0}, 1
v_and_b32 v{TMP}, 7, v{vL}
v_lshl_add_u32 v{TMP}, v{TMP}, 2, s{sT0}
v_cvt_f32_u32 v{vS}, v{TMP}
v_mul_f32 v{vS}, {fbits(1/512)}, v{vS}
s_lshl_b32 s{sT0}, s{sROT}, 6
v_lshl_add_u32 v{TMP}, v{vQ}, 3, s{sT0}
v_cvt_f32_u32 v{TMP}, v{TMP}
v_bfe_u32 v{TMP+1}, v{vL}, 3, 1
v_cvt_f32_u32 v{TMP+1}, v{TMP+1}
v_mul_f32 v{TMP+1}, {fbits(0.25)}, v{TMP+1}
v_fma_f32 v{vB}, v{TMP}, v{vS}, v{TMP+1}
v_fract_f32 v{vB}, v{vB}""")
    npre = o.get('fpre', 3)
    for u in range(npre): g.trig(F + 4 * u, None, vB, vS, [32 * u + i for i in range(8)], TMP)
    srds_common(g)
    nx1 = o.get('nx1', 5)
    for i in range(nx1): g.x_load(i, XK, vXO)
    g.stamp("xiss")
    srds_late(g)
    for u in range(npre, 8): g.trig(F + 4 * u, None, vB, vS, [32 * u + i for i in range(8)], TMP)
    for wh in range(2):
        for kb in range(2):
            g(f"""
s_lshr_b32 s{sT0}, s{sW}, 1
s_xor_b32 s{sT0}, s{sT0}, {wh}
s_lshl1_add_u32 s{sT0}, s{sRG1}, s{sT0}
v_add_u32 v{TMP}, {16*kb}, v{vN}
v_cvt_f32_u32 v{TMP}, v{TMP}
v_mul_f32 v{vS}, {fbits(1/32)}, v{TMP}
v_lshl_add_u32 v{TMP+1}, v{vQ}, 8, s{sT0}
v_cvt_f32_u32 v{TMP+1}, v{TMP+1}
v_mul_f32 v{TMP+1}, {fbits(1/2048)}, v{TMP+1}
v_mul_f32 v{vB}, v{TMP}, v{TMP+1}""")
            e = EA + 16 * wh + 8 * kb
            g.trig(e, e + 4, vB, vS, [16 * (i >> 2) + (i & 3) for i in range(8)], TMP)
    for i in range(nx1, 8): g.x_load(i, XK, vXO)
    g(f"""
v_xor_b32 v{TMP}, v{vN}, v{vQ}
v_lshlrev_b32 v{TMP}, 4, v{TMP}
v_lshl_or_b32 v{TMP}, v{vQ}, 8, v{TMP}
s_lshr_b32 s{sT0}, s{sW}, 1
s_lshl_b32 s{sT0}, s{sT0}, 15
v_add_u32 v{vRD}, s{sT0}, v{TMP}
v_xor_b32 v{vRD+1}, 64, v{vRD}
v_xor_b32 v{vRD+2}, 0x8000, v{vRD}
v_xor_b32 v{vRD+3}, 0x8000, v{vRD+1}
v_mov_b32 v{vONE}, 1
v_mov_b32 v9, 0
v_lshlrev_b32 v{vL16}, 4, v{vL}
v_mov_b32 v{vSY}, {SYNC}""")
    g.stamp("gen")
    dbgload = f"buffer_load_dword v9, off, {sr(SDBG,4)}, 0 sc1"
    def hook(k):
        if k == 7: g.stamp("xarr")
        if k == 8:
            l = g.lab("x0")
            g(f"s_cmp_lg_u32 s{sV}, 0\ns_cbranch_scc1 {l}\n{dbgload}\n{l}:")
    g.layernorm(XK, XK + 32, T, vXL, hook)
    l = g.lab("x0")
    g(f"s_cmp_lg_u32 s{sV}, 0\ns_cbranch_scc1 {l}")
    g(f"v_mov_b32 v{TMP}, 0\nv_lshl_add_u32 v{TMP+1}, v{vN}, 2, v{vSY}\nds_write_b32 v{TMP+1}, v{TMP}")
    g.spin_global(dbgload, None, 9, True)
    g(f"{l}:")
    g.wait(ds='all'); g.bar()
    g.stamp("barA")
    g(f"s_and_b32 s{sT0}, s{sW}, 1\ns_cmp_eq_u32 s{sT0}, 0\ns_cselect_b32 s{sT2}, 0x80008000, 0")
    def rd(u):
        for b in range(2):
            g.ds(f"ds_read_b128 {vr(XK+8*u+4*b,4)}, v{vRD+(u&1)} offset:{16384*b+1024*u}", f"a{u}")
        for b in range(2):
            g.ds(f"ds_read_b128 {vr(T+8*(u%3)+4*b,4)}, v{vRD+2+(u&1)} offset:{16384*b+1024*u}", f"a{u}")
    rd(0); rd(1)
    for u in range(16):
        if u + 2 < 16: rd(u + 2)
        g.wait(ds=f"a{u}")
        if u == 15: g.bar()
        f = F + 4 * (u & 7)
        for b in range(2): g.mfma(AY + 4 * b, XK + 8 * u + 4 * b, f, u == 0)
        for b in range(2): g.mfma(AY + 8 + 4 * b, T + 8 * (u % 3) + 4 * b, f, u == 0)
        if u < 8:
            for k in range(4): g(f"v_xor_b32 v{f+k}, s{sT2}, v{f+k}")
    g.stamp("barB")
    l = g.lab("x1")
    g(f"s_cmp_lg_u32 s{sV}, 1\ns_cbranch_scc1 {l}\ns_lshr_b32 s{sT0}, s2, 3\ns_lshl_b32 s{sT0}, s{sT0}, 7\ns_and_b32 s{sT1}, s2, 7\ns_lshl2_add_u32 s{sT0}, s{sT1}, s{sT0}")
    g.set_flag(f"s{sT0} offset:{FW}", vONE)
    g(f"{l}:")
    vWA = 240
    g(f"""
v_bfe_u32 v{TMP}, v{vL}, 3, 2
v_lshrrev_b32 v{TMP+1}, 2, v{vL}
v_mul_u32_u24 v{TMP+1}, 384, v{TMP+1}
v_and_b32 v{TMP+2}, 3, v{vL}
v_lshl_add_u32 v{TMP+1}, v{TMP+2}, 3, v{TMP+1}
v_add_u32 v{TMP+1}, {SLOT0}, v{TMP+1}
s_and_b32 s{sT0}, s{sW}, 1
s_mul_i32 s{sT0}, s{sT0}, 6
v_bfe_u32 v{TMP+3}, v{vL}, 3, 1
v_mul_u32_u24 v{TMP+3}, 0x8000, v{TMP+3}
v_lshl_or_b32 v{TMP+3}, v{TMP+3}, 16, v{TMP+3}""")
    YF, YP, ZA, ZP = T, T + 8, F, F + 16
    for wh in range(2):
        for e in range(4):
            a = AY + 8 * wh + 2 * e
            g(f"v_cvt_pk_bf16_f32 v{YF+4*wh+e}, v{a}, v{a+1}")
    for k in range(8): g(f"v_xor_b32_dpp v{YP+k}, v{YF+k}, v{TMP+3} {DPP8}")
    for wh in range(2):
        for kb in range(2): g.mfma(ZA + 8 * wh + 4 * kb, EA + 16 * wh + 8 * kb, YF + 4 * wh, True)
    for wh in range(2):
        for kb in range(2): g.mfma(ZA + 8 * wh + 4 * kb, EA + 16 * wh + 8 * kb + 4, YP + 4 * wh)
    for fb in range(6):
        g(f"s_add_u32 s{sT1}, s{sT0}, {fb}\nv_xor_b32 v{TMP+2}, s{sT1}, v{TMP}\nv_lshl_add_u32 v{vWA+fb}, v{TMP+2}, 5, v{TMP+1}")
    g(f"""
v_lshlrev_b32 v{TMP}, 18, v{vQ}
v_lshl_or_b32 v{TMP}, v{vN}, 2, v{TMP}
s_and_b32 s{sT0}, s{sRG1}, 0x18
s_and_b32 s{sT1}, s{sRG1}, 1
s_lshl2_add_u32 s{sT0}, s{sT1}, s{sT0}
s_bfe_u32 s{sT1}, s{sRG1}, 0x20001
s_add_u32 s{sT0}, s{sT0}, s{sT1}
s_lshl_b32 s{sT0}, s{sT0}, 6
s_lshl2_add_u32 s{sT1}, s{sJ1}, s{sW}
s_lshl_b32 s{sT1}, s{sT1}, 11
s_add_u32 s{sA}, s{sT0}, s{sT1}""")
    l1, l2 = g.lab("zs"), g.lab("ze")
    g(f"s_cmp_ge_u32 s{sW}, 2\ns_cbranch_scc1 {l1}")
    for k in range(8): g(f"v_cvt_pk_bf16_f32 v{ZP+k}, v{ZA+k}, v{ZA+8+k}")
    g(f"s_branch {l2}\n{l1}:\ns_nop 7")
    for k in range(8): g(f"v_cvt_pk_bf16_f32 v{ZP+k}, v{ZA+8+k}, v{ZA+k}")
    g(f"{l2}:")
    for k in range(8):
        g(f"s_add_u32 s{sT0}, s{sA}, {WS_Z + (16*(k>>2) + (k&3)) * 65536}")
        g.vm(f"buffer_store_dword v{ZP+k}, v{TMP}, {sr(SWS,4)}, s{sT0} offen sc1", "z")
    g.stamp("zst")
    AC, WF, NB, DEP = 144, 192, 12, o.get('dep', 6)
    bars = {6 * first: name for name, first, _ in RING if name != 'B'}
    base = [SLOT0]
    fwload = f"buffer_load_dwordx4 v[248:251], v9, {sr(SWS,4)}, 0 offen offset:{FW} sc1"
    def rdw(t):
        c, fb = divmod(t, 6)
        if t in bars:
            name = bars[t]
            if name == 'D': g.wait(vm='all')
            if name == 'E1':
                l = g.lab("x0")
                g(f"s_cmp_lg_u32 s{sV}, 0\ns_cbranch_scc1 {l}")
                g.spin_global(fwload, "v_and_b32 v248, v248, v249\nv_and_b32 v250, v250, v251\nv_and_b32 v248, v248, v250", 248, True)
                g(f"{l}:")
            g.bar()
            if name == 'D':
                l = g.lab("x1")
                g(f"s_cmp_lg_u32 s{sV}, 1\ns_cbranch_scc1 {l}\ns_lshr_b32 s{sT0}, s{sRG1}, 3\ns_lshl2_add_u32 s{sT0}, s{sJ1}, s{sT0}\ns_lshl_b32 s{sT0}, s{sT0}, 7")
                g(f"s_and_b32 s{sT1}, s{sRG1}, 7\ns_lshl2_add_u32 s{sT0}, s{sT1}, s{sT0}\ns_add_u32 s{sT0}, s{sT0}, {FZ}")
                g.set_flag(f"s{sT0}", vONE)
                g(f"{l}:")
                l = g.lab("x0")
                g(f"s_cmp_lg_u32 s{sV}, 0\ns_cbranch_scc1 {l}")
                g(f"v_lshrrev_b32 v9, 1, v{vL}\nv_lshlrev_b32 v9, 7, v9\nv_and_b32 v248, 1, v{vL}\nv_lshl_or_b32 v9, v248, 4, v9\n{fwload}\n{l}:")
        off = slot(c) - base[0]
        if fb == 0 and (off < 0 or off + 6144 > 65535):
            for k in range(6): g(f"v_add_u32 v{vWA+k}, {off & 0xffffffff}, v{vWA+k}")
            base[0] = slot(c); off = 0
        for i in range(2):
            g.ds(f"ds_read_b64_tr_b16 {vr(WF+4*(t%NB)+2*i,2)}, v{vWA+fb} offset:{off+6144*i}", f"w{t}")
    for t in range(DEP): rdw(t)
    for t in range(96):
        if t + DEP < 96: rdw(t + DEP)
        g.wait(ds=f"w{t}")
        if t == 95: g.bar()
        u, fb = divmod(t, 6)
        for b in range(2): g.mfma(AC + 24 * b + 4 * fb, WF + 4 * (t % NB), XK + 8 * u + 4 * b, u == 0)
    g.stamp("gemm1")
    HP = 16
    g(f"""
s_mul_i32 s{sA}, s{sRG1}, {TILE}
s_and_b32 s{sT0}, s{sW}, 1
s_mul_i32 s{sT0}, s{sT0}, 3
s_add_u32 s{sT1}, s{sT0}, s{sFS}
s_lshl_b32 s{sT1}, s{sT1}, 12
s_add_u32 s{sA}, s{sA}, s{sT1}
s_lshr_b32 s{sT1}, s{sW}, 1
s_lshl_b32 s{sT1}, s{sT1}, 11
s_add_u32 s{sA}, s{sA}, s{sT1}
s_add_u32 s{sA}, s{sA}, {WS_H}
s_add_u32 s{sT2}, s{sA}, 8192
s_add_u32 s{sT0}, s{sT0}, 2
s_cmp_lt_u32 s{sT0}, s{sFN}
s_cselect_b32 s{sT2}, s{sT2}, {WS_END}
s_add_u32 s{sT1}, s{sA}, 4096""")
    for ks in range(3):
        for b in range(2):
            d = HP + 8 * ks + 4 * b; a = AC + 24 * b + 8 * ks
            for e in range(4): g(f"v_cvt_pk_bf16_f32 v{d+e}, v{a+2*e}, v{a+2*e+1}")
            for e in range(4): g(f"v_pk_max_i16 v{d+e}, v{d+e}, 0")
            g.vm(f"buffer_store_dwordx4 {vr(d,4)}, v{vL16}, {sr(SWS,4)}, s{(sA, sT1, sT2)[ks]} offen offset:{1024*b} sc1", "h")
    g.stamp("hst")
    g(f"s_mul_i32 s{sA}, s{sW}, {11*4096}\ns_mul_i32 s{sB}, s{sW}, {W2L_SZ}")
    def w2l(t):
        g(f"s_add_u32 m0, s{sB}, {4096*t}\ns_add_u32 s{sT0}, s{sA}, {4096*t}")
        for b in range(4):
            g.vm(f"buffer_load_dwordx4 v{vL16}, {sr(SW2P,4)}, s{sT0} offen offset:{1024*b} sc1 lds", "w2l")
    nb4 = o.get('w2l_pre', 5)
    for t in range(nb4): w2l(t)
    g.wait(vm="h")
    l = g.lab("hf")
    g(f"s_mov_b64 exec, 1\nds_add_rtn_u32 v{TMP}, v{vSY}, v{vONE} offset:{CNT_H}\ns_waitcnt lgkmcnt(0)\nv_cmp_eq_u32 vcc, 3, v{TMP}\ns_mov_b64 exec, -1")
    g(f"s_cbranch_vccz {l}\ns_lshl_b32 s{sT0}, s{sRG1}, 7\ns_lshl2_add_u32 s{sT0}, s{sJ1}, s{sT0}\ns_add_u32 s{sT0}, s{sT0}, {FH}")
    g.set_flag(f"s{sT0}", vONE)
    g(f"{l}:")
    g.stamp("hflag")
    for t in range(nb4, 7): w2l(t)
    XF, vFO = 240, 244
    g.final_xload(XF, vFO, TMP)
    UF, GM, EM, DA, TF = 16, 80, 112, 144, 208
    for db in range(2):
        for u in range(2):
            g(f"""
s_lshl_b32 s{sT0}, s{sJ2}, 5
s_add_u32 s{sT0}, s{sT0}, {16*db}
v_add_u32 v{TMP}, s{sT0}, v{vN}
v_cvt_f32_u32 v{TMP}, v{TMP}
v_mul_f32 v{vS}, {fbits(1/128)}, v{TMP}
s_add_u32 s{sT0}, s{sW}, {128*u+1}
v_lshl_add_u32 v{TMP+1}, v{vQ}, 5, s{sT0}
v_cvt_f32_u32 v{TMP+1}, v{TMP+1}
v_mul_f32 v{TMP+1}, {fbits(1/512)}, v{TMP+1}
v_mul_f32 v{vB}, v{TMP}, v{TMP+1}""")
            e = GM + 16 * u + 8 * db
            g.trig(e, e + 4, vB, vS, list(range(8)), TMP)
        if db == 0:
            g.wait(vm="w2l")
            g(f"s_lshl_b32 s{sT0}, s{sW}, 2\nv_add_u32 v{TMP}, s{sT0}, v{vSY}\nds_write_b32 v{TMP}, v{vONE} offset:{WRD_W2}")
    for s2b in range(2):
        for sb in range(2):
            g(f"""
s_lshl1_add_u32 s{sT0}, s{sRG2}, {1024*sb + s2b}
v_lshl_add_u32 v{TMP}, v{vN}, 6, s{sT0}
v_cvt_f32_u32 v{TMP}, v{TMP}
v_mul_f32 v{vS}, {fbits(1/512)}, v{TMP}
v_cvt_f32_u32 v{TMP+1}, v{vQ}
v_mul_f32 v{TMP+1}, {fbits(1/2048)}, v{TMP+1}
v_mul_f32 v{vB}, v{TMP}, v{TMP+1}""")
            e = EM + 16 * s2b + 8 * sb
            g.trig(e, e + 4, vB, vS, list(range(8)), TMP, negsin=True)
    l, l2 = g.lab("x0"), g.lab("x0e")
    g(f"s_cmp_lg_u32 s{sV}, 0\ns_cbranch_scc1 {l}\ns_mov_b32 s{sT0}, {FU}")
    g.spin_global(f"buffer_load_dwordx4 v[248:251], v9, {sr(SWS,4)}, s{sT0} offen sc1",
                  "v_and_b32 v248, v248, v249\nv_and_b32 v250, v250, v251\nv_and_b32 v248, v248, v250", 248, False)
    g(f"ds_write_b32 v{vSY}, v{vONE} offset:{WRD_U}\ns_branch {l2}\n{l}:")
    g.spin_lds(WRD_U, vSY, TMP)
    g(f"{l2}:")
    g.stamp("uflag")
    g(f"s_lshl2_add_u32 s{sA}, s{sRG2}, s{sW}\ns_lshl_b32 s{sA}, s{sA}, 14\ns_add_u32 s{sA}, s{sA}, {WS_U}")
    for mp in range(4):
        if mp: g(f"s_add_u32 s{sA}, s{sA}, 4096")
        for k in range(4):
            g.vm(f"buffer_load_dwordx4 {vr(UF+16*mp+4*k,4)}, v{vL16}, {sr(SWS,4)}, s{sA} offen offset:{1024*k} sc1", f"u{mp}")
    vVA = 245
    g(f"""
v_bfe_u32 v{TMP}, v{vL}, 1, 1
v_and_b32 v{TMP+1}, 1, v{vL}
v_lshl_or_b32 v{TMP}, v{TMP+1}, 1, v{TMP}
v_and_or_b32 v{TMP}, v{vL}, 4, v{TMP}
v_xor_b32 v{TMP}, v{TMP}, v{vQ}
v_lshlrev_b32 v{TMP}, 4, v{TMP}
v_lshl_or_b32 v{TMP}, v{vN}, 7, v{TMP}
s_lshl_b32 s{sT0}, s{sW}, 13
s_add_u32 s{sT0}, s{sT0}, {VREG}
v_add_u32 v{vVA}, s{sT0}, v{TMP}
v_xor_b32 v{vVA+1}, 64, v{vVA}""")
    def st1(mp):
        g.wait(vm=f"u{mp}")
        D = DA + 32 * (mp & 1)
        for u in range(2):
            for m in range(2):
                for db in range(2):
                    for cs in range(2):
                        g.mfma(D + 16 * m + 8 * db + 4 * cs, UF + 16 * mp + 8 * m + 4 * u, GM + 16 * u + 8 * db + 4 * cs, u == 0)
    def comb(mp):
        D = DA + 32 * (mp & 1)
        for m in range(2):
            for db in range(2):
                c, s = D + 16 * m + 8 * db, D + 16 * m + 8 * db + 4
                for s2b in range(2):
                    g(f"v_sub_f32 v{c+2*s2b}, v{c+2*s2b}, v{s+2*s2b+1}\nv_add_f32 v{s+2*s2b}, v{s+2*s2b}, v{c+2*s2b+1}")
        for s2b in range(2):
            for db in range(2):
                for part in range(2):
                    a = D + 8 * db + 4 * part + 2 * s2b
                    g(f"v_cvt_pk_bf16_f32 v{TF+16*s2b+8*db+4*part+mp}, v{a}, v{a+16}")
    st1(0)
    for mp in range(1, 4): st1(mp); comb(mp - 1)
    comb(3)
    VA = 16
    for part in range(2):
        for s2b in range(2):
            for sb in range(2):
                for db in range(2):
                    g.mfma(VA + 16 * s2b + 8 * sb + 4 * db, TF + 16 * s2b + 8 * db + 4 * part, EM + 16 * s2b + 8 * sb + 4 * part, part == 0)
    for mb in range(4):
        for db in range(2):
            g.ds(f"ds_write_b128 v{vVA+db}, {vr(VA+8*mb+4*db,4)} offset:{2048*mb}")
    g(f"v_mov_b32 v8, v{XF}\nv_mov_b32 v9, v{XF+1}\nv_mov_b32 v10, v{XF+2}\nv_mov_b32 v11, v{XF+3}\nv_mov_b32 v12, v{vFO}")
    g("s_branch L_final")


def role_y(g):
    o = g.opt
    BM, R, TMP = 16, 96, 240
    vQ, vN, vXO, vXL, vONE, vL16, vSY = 2, 3, 4, 5, 6, 7, 13
    vW1 = 8
    vB, vS = 14, 15
    g("L_roleY:")
    g(f"v_lshrrev_b32 v{vQ}, 4, v{vL}\nv_and_b32 v{vN}, 15, v{vL}")
    g.x_addr(vXO, vXL, TMP)
    g(f"v_mov_b32 v{vONE}, 1\nv_lshlrev_b32 v{vL16}, 4, v{vL}\nv_mov_b32 v{vSY}, {SYNC}")
    g(f"s_lshl_b32 s{sT1}, s{sFN}, 1\ns_lshl_b32 s{sT2}, s{sW}, 3")
    for t in range(3):
        g(f"""
v_add_u32 v{TMP}, {64*t}, v{vL}
v_mul_u32_u24 v{TMP+1}, 43691, v{TMP}
v_lshrrev_b32 v{TMP+1}, 20, v{TMP+1}
v_mul_u32_u24 v{TMP+2}, 24, v{TMP+1}
v_sub_u32 v{TMP}, v{TMP}, v{TMP+2}
v_add_u32 v{TMP+1}, s{sT2}, v{TMP+1}
v_bfe_u32 v{TMP+2}, v{TMP+1}, 2, 2
v_and_b32 v{TMP+3}, 3, v{TMP+1}
v_lshl_or_b32 v{TMP+2}, v{TMP+2}, 3, v{TMP+3}
v_lshrrev_b32 v{TMP+3}, 4, v{TMP+1}
v_lshl_or_b32 v{TMP+2}, v{TMP+3}, 2, v{TMP+2}
v_mul_u32_u24 v{TMP+2}, 2752, v{TMP+2}
v_bfe_u32 v{TMP+1}, v{TMP+1}, 1, 2
v_lshrrev_b32 v{TMP+3}, 1, v{TMP}
v_xor_b32 v{TMP+1}, v{TMP+1}, v{TMP+3}
v_cmp_gt_u32 vcc, s{sT1}, v{TMP+1}
v_lshl_add_u32 v{TMP+2}, v{TMP+1}, 5, v{TMP+2}
v_and_b32 v{TMP}, 1, v{TMP}
v_lshl_add_u32 v{TMP+2}, v{TMP}, 4, v{TMP+2}
v_subrev_u32 v{TMP+2}, {1024*t}, v{TMP+2}
v_cndmask_b32 v{vW1+t}, 2.0, v{TMP+2}, vcc""")
    vC2 = 11
    g(f"v_lshrrev_b32 v{TMP}, 2, v{vL}\nv_and_b32 v{TMP+1}, 3, v{vL}\nv_lshlrev_b32 v{vC2}, 10, v{TMP}\nv_lshl_or_b32 v{vC2}, v{TMP+1}, 4, v{vC2}")
    g(f"v_lshlrev_b32 v12, 6, v{TMP}\nv_lshl_or_b32 v12, v{TMP+1}, 3, v12\ns_mul_i32 s{sB}, s{sW}, 2560\ns_add_u32 s{sB}, s{sB}, {MISC}\nv_add_u32 v12, s{sB}, v12")
    srds_common(g)
    g.srd(SWS, 20, WS_END)
    lz = g.lab("nz")
    g(f"s_cmp_lg_u32 s2, 0\ns_cbranch_scc1 {lz}\ns_cmp_lg_u32 s{sV}, 7\ns_cbranch_scc1 {lz}")
    for k in range(4): g(f"v_mov_b32 v{TMP+k}, 0")
    for k in range(16):
        g(f"s_mov_b32 s{sT0}, {1024*k}\nbuffer_store_dwordx4 {vr(TMP,4)}, v{vL16}, {sr(SWS,4)}, s{sT0} offen sc1")
    g(f"{lz}:")
    for i in range(8): g.x_load(i, R, vXO)
    g.srd(SW1, 12, 512 * 2752); g.srd(SW2, 14, 1376 * 1024)
    srds_late(g)
    lz = g.lab("nz")
    g(f"s_cmp_lg_u32 s2, 0\ns_cbranch_scc1 {lz}\ns_cmp_lg_u32 s{sV}, 7\ns_cbranch_scc1 {lz}\ns_waitcnt vmcnt(8)")
    g.set_flag("0", vONE, SDBG)
    g(f"{lz}:")
    g.stamp("xiss")
    g(f"""
s_lshr_b32 s{sT0}, s2, 2
s_lshl_b32 s{sT0}, s{sT0}, 15
s_and_b32 s{sT1}, s2, 3
s_lshl2_add_u32 s{sT1}, s{sT1}, s{sW}
s_lshl_b32 s{sT1}, s{sT1}, 6
s_add_u32 s{sT0}, s{sT0}, s{sT1}
s_mov_b32 m0, s{sB}""")
    g.vm(f"buffer_load_dwordx4 v{vC2}, {sr(SW2,4)}, s{sT0} offen lds", "c2")
    g(f"s_add_u32 s{sT0}, s{sT0}, {16384-1024}")
    g.vm(f"buffer_load_dwordx4 v{vC2}, {sr(SW2,4)}, s{sT0} offen offset:1024 lds", "c2")
    g(f"s_mul_i32 s{sA}, s{sW}, 3072\ns_lshl_b32 s3, s{sFS}, 6")
    def chunk(c):
        g(f"s_lshl1_add_u32 s{sT0}, s{sROT}, {c}\ns_and_b32 s{sT0}, s{sT0}, 15\ns_mul_i32 s{sT0}, s{sT0}, {32*2752}\ns_add_u32 m0, s{sA}, {slot(c)}\ns_add_u32 s{sT0}, s{sT0}, s3")
        for t in range(3):
            g.vm(f"buffer_load_dwordx4 v{vW1+t}, {sr(SW1,4)}, s{sT0} offen offset:{1024*t} lds", f"c{c}_")
    ypre = o.get('ypre', 2)
    for c in range(ypre): chunk(c)
    sched = o.get('ysched', {3: 2, 7: 3, 10: 4, 12: 5, 14: 6})
    RL = 80
    def hook(k):
        if k == 7: g.stamp("xarr")
        if k == 8:
            g.wait(vm="c2")
            for nbl in range(2):
                for i in range(2):
                    g.ds(f"ds_read_b64_tr_b16 {vr(RL+4*nbl+2*i,2)}, v12 offset:{1024*i+32*nbl}", "rl")
            g(f"""
s_and_b32 s{sT0}, s2, 1
s_lshl2_add_u32 s{sT0}, s{sT0}, s{sW}
s_mul_i32 s{sT0}, s{sT0}, {TILE}
s_lshr_b32 s{sT1}, s2, 1
s_lshl_b32 s{sT1}, s{sT1}, 11
s_add_u32 s{sT0}, s{sT0}, s{sT1}
s_add_u32 s{sT0}, s{sT0}, {WS_W2}
s_cmp_lt_u32 s2, 172
s_cselect_b32 s{sT0}, s{sT0}, {WS_END}""")
            g.wait(ds="rl")
            for nbl in range(2):
                g.vm(f"buffer_store_dwordx4 {vr(RL+4*nbl,4)}, v{vL16}, {sr(SWS,4)}, s{sT0} offen offset:{1024*nbl} sc1", "rl")
        if k in sched: chunk(sched[k])
    g.layernorm(R, R + 32, 200, vXL, hook)
    g.wait(ds='all'); g.bar()
    g.stamp("barA")
    g(f"""
s_cmp_ge_u32 s{sW}, 2
s_cselect_b32 s{SWW}, s8, s6
s_cselect_b32 s{SWW+1}, s9, s7
s_mov_b32 s{SWW+2}, {2048*514}
s_mov_b32 s{SWW+3}, 0x20000
s_mul_i32 s{sT0}, s{sRG2}, 514
s_add_u32 s{sT0}, s{sT0}, 2
s_and_b32 s{sT2}, s{sT0}, 15
s_sub_u32 s{sT0}, s{sT0}, s{sT2}
s_lshl_b32 s{sT1}, s{sJ2}, 6
s_add_u32 s{sT0}, s{sT0}, s{sT1}
s_and_b32 s{sT1}, s{sW}, 1
s_mul_i32 s{sT1}, s{sT1}, {32*16448}
s_add_u32 s{sT0}, s{sT0}, s{sT1}
s_mov_b32 m0, s{sB}""")
    for t in range(3):
        g(f"""
v_add_u32 v{TMP}, {64*t}, v{vL}
v_mul_u32_u24 v{TMP+1}, 52429, v{TMP}
v_lshrrev_b32 v{TMP+1}, 18, v{TMP+1}
v_mul_u32_u24 v{TMP+1}, {16448-80}, v{TMP+1}
v_add_u32 v{TMP+1}, v{TMP+1}, v{vL16}""")
        if t == 2: g("s_mov_b32 exec_hi, 0")
        g.vm(f"buffer_load_dwordx4 v{TMP+1}, {sr(SWW,4)}, s{sT0} offen offset:{1024*t} lds", "ww")
    g("s_mov_b32 exec_hi, -1")
    g(f"""
v_mul_u32_u24 v12, 320, v{vQ}
v_and_b32 v{TMP}, 7, v{vL}
v_lshl_add_u32 v12, v{TMP}, 3, v12
s_lshl1_add_u32 s{sT2}, s{sW}, s{sT2}
s_add_u32 s{sT2}, s{sT2}, {MISC}
v_add_u32 v12, s{sT2}, v12""")
    for mb in range(2):
        g(f"v_add_u32 v{TMP}, {16*mb}, v{vN}\nv_cvt_f32_u32 v{TMP}, v{TMP}\nv_mul_f32 v{vS}, {fbits(1/64)}, v{TMP}")
        g(f"v_cvt_f32_u32 v{TMP+1}, v{vQ}\nv_mul_f32 v{TMP+1}, 4.0, v{TMP+1}\nv_mul_f32 v{vB}, v{vS}, v{TMP+1}")
        g.trig(BM + 8 * mb, BM + 32 + 8 * mb, vB, vS, [16 * (i >> 2) + (i & 3) for i in range(8)], TMP)
    g(f"v_and_b32 v{TMP}, 1, v{vL}\nv_mul_u32_u24 v{TMP}, 0x8000, v{TMP}\nv_lshl_or_b32 v{TMP}, v{TMP}, 16, v{TMP}\ns_brev_b32 s{sT0}, 1")
    for cs in range(2):
        for mb in range(2):
            b = BM + 32 * cs + 8 * mb
            for k in range(4): g(f"v_xor_b32 v{b+4+k}, v{TMP}, v{b+k}")
            for k in range(8): g(f"v_xor_b32 v{b+16+k}, s{sT0}, v{b+k}")
    ring = {name: last for name, _, last in RING}
    g.wait(vm=[f"c{ring['B']}_", "rl"]); g.bar()
    g.stamp("barB")
    for c in range(7, 12): chunk(c)
    g.wait(vm=[f"c{ring['C']}_", "ww"]); g.bar()
    chunk(12); chunk(13)
    WR = 80
    for k in range(32):
        g.ds(f"ds_read_u16 v{WR+k}, v12 offset:{5120*(k>>4) + 80*(16*((k>>2)&3) + (k&3))}", "wr")
    g.wait(vm=f"c{ring['D']}_"); g.bar()
    chunk(14); chunk(15)
    g(f"""
v_mov_b32 v{TMP}, 1.0
v_and_b32 v{TMP+1}, 7, v{vL}
s_lshl2_add_u32 s{sT0}, s{sJ2}, s{sW}
v_lshl_add_u32 v{TMP+1}, s{sT0}, 3, v{TMP+1}
v_cmp_ne_u32 vcc, 0xff, v{TMP+1}
v_bfe_u32 v{TMP+2}, v{vL}, 3, 1
v_cndmask_b32 v{TMP}, 0.5, v{TMP}, vcc
v_mul_f32 v{TMP}, {fbits(2.0**-19)}, v{TMP}
v_mul_u32_u24 v{TMP+2}, 0x8000, v{TMP+2}
v_lshl_or_b32 v{vB}, v{TMP+2}, 16, v{TMP+2}
v_xor_b32 v{vS}, 0x80008000, v{vB}
v_and_b32 v{TMP+2}, 0x80000000, v{vS}
v_xor_b32 v{TMP+1}, v{TMP+2}, v{TMP}""")
    g.wait(ds="wr")
    for k in range(32): g(f"v_lshlrev_b32 v{WR+k}, 16, v{WR+k}\nv_mul_f32 v{WR+k}, v{TMP+(k>>4)}, v{WR+k}")
    g.wait(vm=f"c{ring['D2']}_"); g.bar()
    g.wait(vm=f"c{ring['E1']}_"); g.bar()
    W2R = 192
    g(f"s_mul_i32 s{sA}, s{sW}, {11*4096}")
    def w2r(t):
        g(f"s_add_u32 s{sT0}, s{sA}, {4096*(7+t)}")
        for b in range(4):
            g.vm(f"buffer_load_dwordx4 {vr(W2R+16*t+4*b,4)}, v{vL16}, {sr(SW2P,4)}, s{sT0} offen offset:{1024*b} sc1", "w2r")
    w2r(0)
    g.wait(vm=f"c{ring['E2']}_"); g.bar()
    w2r(1); w2r(2)
    g.bar()
    g.stamp("barF")
    w2r(3)
    l, l2 = g.lab("y0"), g.lab("y0e")
    T2 = 176
    g(f"s_cmp_lg_u32 s{sV}, 4\ns_cbranch_scc1 {l}")
    g(f"v_bfe_u32 v{T2}, v{vL}, 3, 2\nv_lshlrev_b32 v{T2}, 7, v{T2}\nv_and_b32 v{T2+1}, 7, v{vL}\nv_lshl_or_b32 v{T2}, v{T2+1}, 2, v{T2}")
    g(f"s_lshl_b32 s{sT0}, s{sJ2}, 9\ns_add_u32 s{sT0}, s{sT0}, {FZ}")
    g.spin_global(f"buffer_load_dword v{T2+1}, v{T2}, {sr(SWS,4)}, s{sT0} offen sc1", None, T2 + 1, False)
    g(f"ds_write_b32 v{vSY}, v{vONE} offset:{WRD_Z}\ns_branch {l2}\n{l}:")
    g.spin_lds(WRD_Z, vSY, T2)
    g(f"{l2}:")
    g.stamp("zflag")
    ZF, ZP, P, QF, QP, D = 112, 120, 128, 144, 152, 160
    g(f"""
v_lshlrev_b32 v{T2}, 2, v{vL}
s_lshl_b32 s{sT0}, s{sRG2}, 16
s_lshl2_add_u32 s{sT1}, s{sJ2}, s{sW}
s_lshl_b32 s{sT1}, s{sT1}, 11
s_add_u32 s{sT0}, s{sT0}, s{sT1}
s_add_u32 s{sT0}, s{sT0}, {WS_Z}""")
    for k in range(8):
        g.vm(f"buffer_load_dword v{ZF+k}, v{T2}, {sr(SWS,4)}, s{sT0} offen offset:{256*k} sc1", "zl")
    XF, vFO = 8, 12
    g.final_xload(XF, vFO, T2)
    g(f"""
s_lshl_b32 s{sT0}, s{sW}, 11
s_add_u32 s{sT0}, s{sT0}, {VREG}
v_lshlrev_b32 v{T2}, 5, v{vN}
v_lshl_or_b32 v{T2}, v{vQ}, 3, v{T2}
v_add_u32 v{T2}, s{sT0}, v{T2}
v_add_u32 v{T2+1}, s{sT0}, v{vL16}
v_lshrrev_b32 v{T2+2}, 2, v{vL}
v_lshlrev_b32 v{T2+2}, 16, v{T2+2}
v_and_b32 v{T2+3}, 3, v{vL}
v_lshl_or_b32 v{T2+2}, v{T2+3}, 4, v{T2+2}
s_lshl_b32 s3, s{sW}, 14
s_lshr_b32 s{sT0}, s{sRG2}, 2
s_lshl_b32 s{sT0}, s{sT0}, 11
s_add_u32 s3, s3, s{sT0}
s_and_b32 s{sT0}, s{sRG2}, 3
s_lshl2_add_u32 s{sT0}, s{sJ2}, s{sT0}
s_lshl_b32 s{sT0}, s{sT0}, 6
s_add_u32 s3, s3, s{sT0}
s_add_u32 s3, s3, {WS_U}
s_add_u32 s{sT2}, s3, {16*65536}
s_mul_i32 s{sT0}, s{sRG2}, {TILE}
s_add_u32 s{sT0}, s{sT0}, {WS_H}
s_add_u32 s{SH}, s20, s{sT0}
s_addc_u32 s{SH+1}, s21, 0
s_mov_b32 s{SH+2}, {TILE}
s_mov_b32 s{SH+3}, 0x20000""")
    g.wait(vm="zl")
    for k in range(8): g(f"v_xor_b32_dpp v{ZP+k}, v{ZF+k}, v{vB} {DPP8}")
    for u in range(2):
        for mb in range(4): g.mfma(P + 4 * mb, BM + 8 * mb + 4 * u, ZF + 4 * u, u == 0)
    for u in range(2):
        for mb in range(4): g.mfma(P + 4 * mb, BM + 32 + 8 * mb + 4 * u, ZP + 4 * u)
    for k in range(16): g(f"v_mul_f32 v{D+k}, v{P+k}, v{WR+k}")
    for k in range(16): g(f"v_fmac_f32_dpp v{D+k}, v{P+k}, v{WR+16+k} {DPP8}")
    for k in range(8): g(f"v_cvt_pk_bf16_f32 v{QF+k}, v{D+2*k}, v{D+2*k+1}")
    for k in range(8): g(f"v_xor_b32_dpp v{QP+k}, v{QF+k}, v{vS} {DPP8}")
    for u in range(2):
        for nb in range(4): g.mfma(P + 4 * nb, QF + 4 * u, BM + 8 * nb + 4 * u, u == 0)
    for u in range(2):
        for nb in range(4): g.mfma(P + 4 * nb, QP + 4 * u, BM + 32 + 8 * nb + 4 * u)
    for nb in range(4):
        g(f"v_cvt_pk_bf16_f32 v{D+2*nb}, v{P+4*nb}, v{P+4*nb+1}\nv_cvt_pk_bf16_f32 v{D+2*nb+1}, v{P+4*nb+2}, v{P+4*nb+3}")
        g.ds(f"ds_write_b64 v{T2}, {vr(D+2*nb,2)} offset:{512*nb}")
    for t in range(2): g.ds(f"ds_read_b128 {vr(D+8+4*t,4)}, v{T2+1} offset:{1024*t}", f"b{t}")
    for t in range(2):
        g.wait(ds=f"b{t}")
        g.vm(f"buffer_store_dwordx4 {vr(D+8+4*t,4)}, v{T2+2}, {sr(SWS,4)}, {('s3', f's{sT2}')[t]} offen sc1", "us")
    g.stamp("ust")
    g.wait(vm='all')
    l = g.lab("uf")
    g(f"s_mov_b64 exec, 1\nds_add_rtn_u32 v{T2}, v{vSY}, v{vONE} offset:{CNT_U}\ns_waitcnt lgkmcnt(0)\nv_cmp_eq_u32 vcc, 3, v{T2}\ns_mov_b64 exec, -1")
    g(f"s_cbranch_vccz {l}\ns_lshr_b32 s{sT0}, s2, 3\ns_lshl_b32 s{sT0}, s{sT0}, 7\ns_and_b32 s{sT1}, s2, 7\ns_lshl2_add_u32 s{sT0}, s{sT1}, s{sT0}\ns_add_u32 s{sT0}, s{sT0}, {FU}")
    g.set_flag(f"s{sT0}", vONE)
    g(f"{l}:")
    g.stamp("udrain")
    l, l2 = g.lab("y0"), g.lab("y0e")
    g(f"s_cmp_lg_u32 s{sV}, 4\ns_cbranch_scc1 {l}")
    g(f"v_and_b32 v{T2}, 7, v{vL}\nv_lshlrev_b32 v{T2}, 2, v{T2}\ns_lshl_b32 s{sT0}, s{sRG2}, 7\ns_add_u32 s{sT0}, s{sT0}, {FH}")
    g.spin_global(f"buffer_load_dword v{T2+1}, v{T2}, {sr(SWS,4)}, s{sT0} offen sc1", None, T2 + 1, False)
    g(f"ds_write_b32 v{vSY}, v{vONE} offset:{WRD_H}\ns_branch {l2}\n{l}:")
    g.spin_lds(WRD_H, vSY, T2)
    g(f"{l2}:")
    g.stamp("hflag")
    AC, LF, HB, HD = 16, 80, 112, 5
    order = [7, 8, 9, 10, 0, 1, 2, 3, 4, 5, 6]
    def hl(n):
        g(f"s_add_u32 s{sT0}, s{sA}, {4096*order[n]}")
        for b in range(4):
            g.vm(f"buffer_load_dwordx4 {vr(HB+16*(n%HD)+4*b,4)}, v{vL16}, {sr(SH,4)}, s{sT0} offen offset:{1024*b} sc1", f"h{n}")
    for n in range(HD): hl(n)
    g(f"""
s_mul_i32 s{sT0}, s{sW}, {W2L_SZ}
v_add_u32 v{vXO}, s{sT0}, v{vL16}
v_and_b32 v{vXL}, 7, v{vL}
v_xor_b32 v{vXL}, v{vXL}, v{vQ}
v_lshlrev_b32 v{vXL}, 4, v{vXL}
v_lshl_or_b32 v{vXL}, v{vN}, 8, v{vXL}
v_add_u32 v{vXL}, s{sT0}, v{vXL}
v_xor_b32 v{vB}, 64, v{vXL}
s_lshl_b32 s{sT0}, s{sW}, 2
v_add_u32 v{vS}, s{sT0}, v{vSY}""")
    def lrd(n):
        for b in range(4):
            g.ds(f"ds_read_b128 {vr(LF+16*(n&1)+4*b,4)}, v{vXO} offset:{4096*order[n]+1024*b}", f"l{n}")
    for n in range(11):
        if n == 3: g.spin_lds(WRD_W2, vS, LF)
        if 3 <= n < 10: lrd(n + 1)
        g.wait(vm=f"h{n}", ds=(f"l{n}" if n >= 4 else None))
        wf = W2R + 16 * n if n < 4 else LF + 16 * (n & 1)
        for mb in range(4):
            for nb in range(4): g.mfma(AC + 16 * mb + 4 * nb, wf + 4 * nb, HB + 16 * (n % HD) + 4 * mb, n == 0)
            if n == 10 and mb:
                for nb in range(4):
                    g.ds(f"ds_write_b128 v{(vXL, vB)[nb&1]}, {vr(AC+16*(mb-1)+4*nb,4)} offset:{4096*(mb-1)+128*(nb>>1)}")
        if n + HD < 11: hl(n + HD)
    for nb in range(4):
        g.ds(f"ds_write_b128 v{(vXL, vB)[nb&1]}, {vr(AC+48+4*nb,4)} offset:{4096*3+128*(nb>>1)}")


def final(g):
    g("L_final:")
    g(f"""
v_lshrrev_b32 v2, 3, v{vL}
v_and_b32 v3, 7, v{vL}
v_lshlrev_b32 v4, 1, v3
v_xor_b32 v4, v4, v2
v_lshlrev_b32 v4, 4, v4
v_lshl_or_b32 v4, v2, 8, v4
s_lshl_b32 s{sT0}, s{sV}, 11
v_add_u32 v4, s{sT0}, v4
v_xor_b32 v5, 16, v4
v_add_u32 v6, {2*W2L_SZ}, v4
v_add_u32 v7, {2*W2L_SZ}, v5
v_bfe_u32 v13, v{vL}, 4, 1
v_bfe_u32 v14, v{vL}, 3, 1
v_lshl_or_b32 v13, v14, 1, v13
v_and_or_b32 v13, v2, 4, v13
v_and_b32 v14, 3, v{vL}
v_lshlrev_b32 v14, 1, v14
v_xor_b32 v13, v13, v14
v_lshlrev_b32 v13, 4, v13
v_lshl_or_b32 v13, v2, 7, v13
s_lshl_b32 s{sT0}, s{sV}, 10
s_add_u32 s{sT0}, s{sT0}, {VREG}
v_add_u32 v13, s{sT0}, v13
v_xor_b32 v14, 16, v13
v_bfe_u32 v2, v{vL}, 2, 1
v_lshlrev_b32 v2, 31, v2
v_xor_b32 v2, 1.0, v2
s_waitcnt vmcnt(0) lgkmcnt(0)
s_barrier""")
    if g.opt.get('stamps'): g(f"s_memtime s[4:5]")
    YP, VP = 96, 128
    for w in range(4):
        for i in range(2):
            g.ds(f"ds_read_b128 {vr(YP+8*w+4*i,4)}, v{4+i+2*(w>>1)} offset:{W2L_SZ*(w&1)}", f"y{w}")
    for w in (0, 2, 1, 3):
        for i in range(2):
            g.ds(f"ds_read_b128 {vr(VP+8*w+4*i,4)}, v{13+i} offset:{8192*w}", f"v{w}")
    XU = 160
    for k in range(4): g(f"v_lshlrev_b32 v{XU+2*k}, 16, v{8+k}\nv_and_b32 v{XU+2*k+1}, s{sHI}, v{8+k}")
    g.wait(ds="y1")
    for k in range(4): g(f"v_pk_add_f32 {vr(YP+2*k,2)}, {vr(YP+2*k,2)}, {vr(YP+8+2*k,2)}")
    g.wait(ds="y3")
    for k in range(4): g(f"v_pk_add_f32 {vr(YP+16+2*k,2)}, {vr(YP+16+2*k,2)}, {vr(YP+24+2*k,2)}")
    for k in range(4): g(f"v_pk_add_f32 {vr(YP+2*k,2)}, {vr(YP+2*k,2)}, {vr(YP+16+2*k,2)}")
    E = YP + 8
    for k in range(8): g(f"v_mul_f32 v{E+k}, {fbits(-1.4426950408889634)}, v{YP+k}")
    for k in range(8): g(f"v_exp_f32 v{E+k}, v{E+k}")
    for k in range(8): g(f"v_add_f32 v{E+k}, 1.0, v{E+k}")
    for k in range(8): g(f"v_rcp_f32 v{E+k}, v{E+k}")
    g.wait(ds="v2")
    for k in range(4): g(f"v_pk_add_f32 {vr(VP+2*k,2)}, {vr(VP+2*k,2)}, {vr(VP+16+2*k,2)}")
    g.wait(ds="v3")
    for k in range(4): g(f"v_pk_add_f32 {vr(VP+8+2*k,2)}, {vr(VP+8+2*k,2)}, {vr(VP+24+2*k,2)}")
    for k in range(4): g(f"v_pk_fma_f32 {vr(VP+2*k,2)}, {vr(VP+2*k,2)}, v[2:3], {vr(VP+8+2*k,2)} op_sel_hi:[1,0,1]")
    for k in range(4): g(f"v_pk_mul_f32 {vr(YP+2*k,2)}, {vr(YP+2*k,2)}, {vr(E+2*k,2)}")
    for k in range(4): g(f"v_pk_fma_f32 {vr(XU+2*k,2)}, {vr(VP+2*k,2)}, {vr(YP+2*k,2)}, {vr(XU+2*k,2)}")
    for k in range(4): g(f"v_cvt_pk_bf16_f32 v{8+k}, v{XU+2*k}, v{XU+2*k+1}")
    g(f"buffer_store_dwordx4 v[8:11], v12, {sr(SOUT,4)}, s{sB} offen {g.opt.get('outaux', 'sc1')}")
    if g.opt.get('stamps'):
        g(f"s_memtime s[6:7]\ns_waitcnt vmcnt(0)\ns_memtime s[8:9]\ns_memrealtime s[10:11]\ns_waitcnt lgkmcnt(0)")
        g(f"s_lshl3_add_u32 s{sT0}, s2, s{sV}\ns_lshl_b32 s{sT0}, s{sT0}, 6\ns_add_u32 s{sT0}, s{sT0}, {WS_STAMP}\ns_mov_b64 exec, 1")
        regs = [sSTAMP + 2 * k for k in range(12)] + [4, 6, 8, 10]
        for k, s in enumerate(regs):
            g(f"v_mov_b32 v2, s{s}\nbuffer_store_dword v2, off, {sr(SWS,4)}, s{sT0} offset:{4*k}")
    g("L_end:\ns_endpgm")


HEAD = """; Fused layernorm + 2-D spectral filter + ReLU FFN gate, one persistent launch (256 workgroups, one per CU).
; @launch grid=(256,1,1) block=(512,1,1) lds=163840
"""

def build(opt):
    g = G(opt)
    prologue(g)
    n0 = g.nst; names0 = list(g.names)
    role_x(g); nx = list(g.names)
    g.vmq = []; g.dsq = []; g.nst = n0; g.names = list(names0)
    role_y(g); ny = list(g.names)
    g.vmq = []; g.dsq = []
    final(g)
    body = pad_hazards(g.L)
    txt = HEAD + f'.amdgcn_target "amdgcn-amd-amdhsa--gfx950"\n.text\n.globl {KN}\n.p2align 8\n.type {KN},@function\n{KN}:\n'
    txt += "\n".join(l if l.endswith(':') else "    " + l for l in body) + "\n"
    txt += f""".section .rodata,"a"
.p2align 6
.amdhsa_kernel {KN}
  .amdhsa_next_free_vgpr 256
  .amdhsa_next_free_sgpr 102
  .amdhsa_accum_offset 256
  .amdhsa_group_segment_fixed_size 0
  .amdhsa_kernarg_size 72
  .amdhsa_user_sgpr_count 2
  .amdhsa_user_sgpr_kernarg_segment_ptr 1
  .amdhsa_system_sgpr_workgroup_id_x 1
.end_amdhsa_kernel
"""
    return txt, nx, ny

if __name__ == "__main__":
    import json
    out = sys.argv[1]
    opt = eval(sys.argv[2]) if len(sys.argv) > 2 else {}
    txt, nx, ny = build(opt)
    if opt.get('stamps'): txt += f"; STAMPS {json.dumps([nx, ny])}\n"
    open(out, "w").write(txt)
```

```python
import sys, struct
from asmtool import Prog, pad_hazards

KN = "recurrent_scan__spectral_gfnet__dense_activation_relu__prompt_kernel"

def fbits(x): return "0x%08x" % struct.unpack("<I", struct.pack("<f", x))[0]
def vr(b, n=1): return f"v{b}" if n == 1 else f"v[{b}:{b+n-1}]"
def sr(b, n=1): return f"s{b}" if n == 1 else f"s[{b}:{b+n-1}]"

FH, FW = 0, 4096
WS_Z, WS_U, WS_W2, WS_H, WS_END = 0x100000, 0x300000, 0x500000, 0x700000, 0x1000000
WS_STAMP = 0xE00000
TILE = 43 * 4096
XN = 0
SLOT0 = 65536
MISC = 151552
SYNC = 163776
CNT_H, CNT_U, WRD_Z, WRD_H, WRD_U, WRD_W2 = 0, 4, 8, 12, 16, 32
W2L_SZ = 28672
VREG = 114688
BOUNCE = 147456
def slot(c):
    if c < 7: return SLOT0 + 12288 * c
    if c < 12: return XN + 12288 * (c - 7)
    return SLOT0 + 12288 * (c - 12)
SX, SW1, SW2, SWS, SOUT, SDBG, SWW, SH, SW2P, SCODE = 24, 28, 32, 36, 40, 44, 48, 52, 56, 60
sV, sW, sRG1, sJ1, sROT, sRG2, sJ2, sFS, sFN = 64, 65, 66, 67, 68, 69, 70, 71, 72
sHI, sT0, sT1, sT2, sT3, sA, sB = 73, 74, 75, 76, 77, 22, 23
sONE, sRET = 10, 11
sSTAMP = 78
vL = 1

MFMA = "v_mfma_f32_16x16x32_bf16"
DPP8 = "row_ror:8 row_mask:0xf bank_mask:0xf"

class G(Prog):
    def __init__(self, opt):
        super().__init__(); self.opt = opt; self.nst = 0; self.names = []; self.uid = 0; self.role = ''
    def stamp(self, name):
        if self.opt.get('probe') == (self.role, name): self(f"s_memrealtime {sr(sSTAMP + 2, 2)}")
        if not self.opt.get('stamps'): return
        if name != 'start' and name not in self.opt['stamps']: return
        if self.nst >= 11: raise Exception("too many stamps")
        self(f"s_memtime {sr(sSTAMP + 2 + 2 * self.nst, 2)}"); self.nst += 1; self.names.append(name)
    def lab(self, base):
        self.uid += 1; return f"L_{base}_{self.uid}"
    def mfma(self, d, a, b, first=False):
        self(f"{MFMA} {vr(d,4)}, {vr(a,4)}, {vr(b,4)}, {'0' if first else vr(d,4)}")
    def srd(self, d, b, n):
        self(f"s_mov_b32 s{d}, s{b}\ns_mov_b32 s{d+1}, s{b+1}\ns_mov_b32 s{d+2}, {n}\ns_mov_b32 s{d+3}, 0x20000")
    def bar(self): self("s_barrier")

    def trig(self, dcos, dsin, base, step, mults, t, negsin=False):
        for e in range(4):
            for h in range(2):
                m = mults[2 * e + h]
                if m == 0: self(f"v_mov_b32 {vr(t+h)}, {vr(base)}")
                else: self(f"v_fmamk_f32 {vr(t+h)}, {vr(step)}, {fbits(float(m))}, {vr(base)}")
            self(f"v_cos_f32 {vr(t+2)}, {vr(t)}\nv_cos_f32 {vr(t+3)}, {vr(t+1)}")
            if dsin is not None:
                self(f"v_sin_f32 {vr(t+4)}, {vr(t)}\nv_sin_f32 {vr(t+5)}, {vr(t+1)}")
            self(f"v_cvt_pk_bf16_f32 {vr(dcos+e)}, {vr(t+2)}, {vr(t+3)}")
            if dsin is not None:
                n = '-' if negsin else ''
                self(f"v_cvt_pk_bf16_f32 {vr(dsin+e)}, {n}{vr(t+4)}, {n}{vr(t+5)}")

    def spin_global(self, load, reduce, vres, first_issued, want=1):
        top, chk, done = self.lab("sp"), self.lab("ck"), self.lab("dn")
        self(f"s_mov_b32 s{sT3}, 0")
        if first_issued: self(f"s_branch {chk}")
        self(f"{top}:")
        self(load)
        self(f"{chk}:")
        self("s_waitcnt vmcnt(0)")
        if reduce: self(reduce)
        self(f"v_cmp_ne_u32 vcc, {want}, {vr(vres)}\ns_add_u32 s{sT3}, s{sT3}, 1\ns_nop 0")
        self(f"s_cbranch_vccz {done}\ns_cmp_gt_u32 s{sT3}, 30000\ns_cbranch_scc1 {done}\ns_sleep {self.opt.get('sleep', 2)}\ns_branch {top}\n{done}:")
    def spin_lds(self, off, vaddr, vt):
        top, done = self.lab("ls"), self.lab("ld")
        self(f"s_mov_b32 s{sT3}, 0\n{top}:\nds_read_b32 {vr(vt)}, {vr(vaddr)} offset:{off}\ns_waitcnt lgkmcnt(0)")
        self(f"v_cmp_ne_u32 vcc, 1, {vr(vt)}\ns_add_u32 s{sT3}, s{sT3}, 1\ns_nop 0")
        self(f"s_cbranch_vccz {done}\ns_cmp_gt_u32 s{sT3}, 0x80000\ns_cbranch_scc1 {done}\ns_sleep 1\ns_branch {top}\n{done}:")
        self.dsq = []
    def s_add1(self, off, base=20):
        self(f"s_atomic_add s{sONE}, {sr(base,2)}, {off}")
    def spin_scalar(self, off, want):
        top, done = self.lab("ss"), self.lab("sd")
        self(f"s_mov_b32 s{sT3}, 0\n{top}:\ns_load_dword s{sRET}, s[20:21], {off} glc\ns_waitcnt lgkmcnt(0)\ns_cmp_eq_u32 s{sRET}, {want}")
        self(f"s_cbranch_scc1 {done}\ns_add_u32 s{sT3}, s{sT3}, 1\ns_cmp_gt_u32 s{sT3}, 30000\ns_cbranch_scc1 {done}\ns_sleep {self.opt.get('ssleep', 2)}\ns_branch {top}\n{done}:")
    def set_flag(self, soff, vone, base_srd=SWS):
        self(f"s_mov_b64 exec, 1\nbuffer_store_dword {vr(vone)}, off, {sr(base_srd,4)}, {soff} sc1\ns_mov_b64 exec, -1")

    def layernorm(self, R, Fp, t, vaddr, hook=lambda k: None):
        S0, S1, Q0, Q1, RN = t, t + 2, t + 4, t + 6, t + 8
        for i in range(8):
            self.wait(vm=f"x{i}")
            for k in range(4):
                f = Fp + 8 * i + 2 * k
                self(f"v_lshlrev_b32 {vr(f)}, 16, {vr(R+4*i+k)}\nv_and_b32 {vr(f+1)}, s{sHI}, {vr(R+4*i+k)}")
            for k in range(4):
                f = Fp + 8 * i + 2 * k; s = (S0, S1)[k & 1]; q = (Q0, Q1)[k & 1]
                if i == 0 and k < 2:
                    self(f"v_pk_mul_f32 {vr(q,2)}, {vr(f,2)}, {vr(f,2)}")
                elif i == 0:
                    self(f"v_pk_add_f32 {vr(s,2)}, {vr(f-4,2)}, {vr(f,2)}\nv_pk_fma_f32 {vr(q,2)}, {vr(f,2)}, {vr(f,2)}, {vr(q,2)}")
                else:
                    self(f"v_pk_add_f32 {vr(s,2)}, {vr(s,2)}, {vr(f,2)}\nv_pk_fma_f32 {vr(q,2)}, {vr(f,2)}, {vr(f,2)}, {vr(q,2)}")
            hook(i)
        self(f"v_pk_add_f32 {vr(S0,2)}, {vr(S0,2)}, {vr(S1,2)}\nv_pk_add_f32 {vr(Q0,2)}, {vr(Q0,2)}, {vr(Q1,2)}")
        self(f"v_add_f32 {vr(S0)}, {vr(S0)}, {vr(S0+1)}\nv_add_f32 {vr(Q0)}, {vr(Q0)}, {vr(Q0+1)}")
        for mode in ("quad_perm:[1,0,3,2]", "quad_perm:[2,3,0,1]", "row_half_mirror"):
            self(f"v_add_f32_dpp {vr(S0)}, {vr(S0)}, {vr(S0)} {mode} row_mask:0xf bank_mask:0xf")
            self(f"v_add_f32_dpp {vr(Q0)}, {vr(Q0)}, {vr(Q0)} {mode} row_mask:0xf bank_mask:0xf")
        self(f"v_mul_f32 {vr(S0)}, {fbits(1/512)}, {vr(S0)}\nv_mul_f32 {vr(Q0)}, {fbits(1/512)}, {vr(Q0)}")
        self(f"v_fma_f32 {vr(Q0)}, -{vr(S0)}, {vr(S0)}, {vr(Q0)}\nv_max_f32 {vr(Q0)}, 0, {vr(Q0)}")
        self(f"v_add_f32 {vr(Q0)}, {fbits(1e-5)}, {vr(Q0)}\nv_rsq_f32 {vr(RN)}, {vr(Q0)}")
        self(f"v_mul_f32 {vr(RN+1)}, -{vr(S0)}, {vr(RN)}")
        hook(8)
        for i in range(8):
            for k in range(4):
                f = Fp + 8 * i + 2 * k
                self(f"v_pk_fma_f32 {vr(f,2)}, {vr(f,2)}, {vr(RN,2)}, {vr(RN,2)} op_sel:[0,0,1] op_sel_hi:[1,0,1]")
            for k in range(4):
                f = Fp + 8 * i + 2 * k
                self(f"v_cvt_pk_bf16_f32 {vr(R+4*i+k)}, {vr(f)}, {vr(f+1)}")
            self.ds(f"ds_write_b128 {vr(vaddr)}, {vr(R+4*i,4)} offset:{2048*i}")
            hook(9 + i)

    def x_addr(self, voff, vlds, t):
        self(f"""
v_lshrrev_b32 {vr(t)}, 3, v{vL}
v_and_b32 {vr(t+1)}, 7, v{vL}
v_lshlrev_b32 {vr(voff)}, 16, {vr(t)}
v_lshl_or_b32 {vr(voff)}, {vr(t+1)}, 4, {vr(voff)}
v_xor_b32 {vr(t)}, {vr(t)}, {vr(t+1)}
v_lshlrev_b32 {vr(t)}, 4, {vr(t)}
v_lshl_or_b32 {vr(vlds)}, {vr(t+1)}, 8, {vr(t)}
s_and_b32 s{sT2}, s{sJ1}, {1 if self.opt.get('xswap', 1) else 0}
s_lshl_b32 s{sT2}, s{sT2}, 2
s_xor_b32 s{sT2}, s{sT2}, s{sV}
s_lshr_b32 s{sT0}, s{sT2}, 1
s_lshl_b32 s{sT0}, s{sT0}, 14
s_and_b32 s{sT1}, s{sV}, 1
s_lshl_b32 s{sT1}, s{sT1}, 7
s_add_u32 s{sT0}, s{sT0}, s{sT1}
v_add_u32 {vr(vlds)}, s{sT0}, {vr(vlds)}
s_lshl_b32 s{sA}, s{sW}, 19
s_lshl_b32 s{sT0}, s{sRG1}, 11
s_add_u32 s{sA}, s{sA}, s{sT0}
s_lshr_b32 s{sT0}, s{sT2}, 2
s_lshl_b32 s{sT0}, s{sT0}, 10
s_add_u32 s{sA}, s{sA}, s{sT0}""")
    def x_load(self, i, R, voff):
        self(f"s_add_u32 s{sT0}, s{sROT}, {i}\ns_and_b32 s{sT0}, s{sT0}, 7\ns_lshl_b32 s{sT0}, s{sT0}, 7\ns_add_u32 s{sT0}, s{sT0}, s{sA}")
        self.vm(f"buffer_load_dwordx4 {vr(R+4*i,4)}, {vr(voff)}, {sr(SX,4)}, s{sT0} offen", f"x{i}")

    def final_xload(self, dst, voff, t):
        self(f"""
v_lshrrev_b32 {vr(t)}, 3, v{vL}
v_lshlrev_b32 {vr(voff)}, 16, {vr(t)}
v_bfe_u32 {vr(t)}, v{vL}, 2, 1
v_lshl_or_b32 {vr(voff)}, {vr(t)}, 9, {vr(voff)}
v_and_b32 {vr(t)}, 3, v{vL}
v_lshl_or_b32 {vr(voff)}, {vr(t)}, 4, {vr(voff)}
s_lshl_b32 s{sB}, s{sW}, 19
s_lshl_b32 s{sT0}, s{sRG2}, 11
s_add_u32 s{sB}, s{sB}, s{sT0}
s_lshr_b32 s{sT0}, s{sV}, 2
s_lshl_b32 s{sT0}, s{sT0}, 10
s_add_u32 s{sB}, s{sB}, s{sT0}
s_lshl_b32 s{sT0}, s{sJ2}, 6
s_add_u32 s{sB}, s{sB}, s{sT0}""")
        self.vm(f"buffer_load_dwordx4 {vr(dst,4)}, {vr(voff)}, {sr(SX,4)}, s{sB} offen", "xf")


def prologue(g):
    g(f"""
s_cmp_ge_u32 s2, 256
s_cbranch_scc1 L_end
s_load_dwordx16 s[4:19], s[0:1], 0
s_load_dwordx2 s[20:21], s[0:1], 64""")
    if g.opt.get('stamps'):
        g(f"s_memrealtime {sr(sSTAMP,2)}"); g.stamp("start")
    if g.opt.get('probe'): g(f"s_memrealtime {sr(sSTAMP,2)}\ns_memrealtime {sr(sSTAMP+2,2)}")
    g(f"""
s_getpc_b64 s[{SCODE}:{SCODE+1}]
L_pc:
s_mov_b32 s{SCODE+2}, L_end-L_pc
s_mov_b32 s{SCODE+3}, 0x20000
v_lshrrev_b32 v2, 6, v0
v_lshlrev_b32 v3, 7, v2
s_lshr_b32 s3, s2, 3
s_lshl_b32 s{sT0}, s3, 10
buffer_load_dword v239, v3, {sr(SCODE,4)}, s{sT0} offen
v_readfirstlane_b32 s{sV}, v2
v_and_b32 v{vL}, 63, v0
s_and_b32 s{sT0}, s2, 3
s_lshl_b32 s{sT0}, s{sT0}, 3
s_bfe_u32 s{sT1}, s2, 0x10002
s_lshl_b32 s{sT1}, s{sT1}, 2
s_and_b32 s{sT2}, s3, 7
s_add_u32 s{sRG1}, s{sT0}, s{sT2}
s_lshr_b32 s{sT3}, s3, 3
s_add_u32 s{sJ1}, s{sT1}, s{sT3}
s_lshl1_add_u32 s{sROT}, s{sT3}, s{sT2}
s_bfe_u32 s{sT2}, s2, 0x10002
s_add_u32 s{sROT}, s{sROT}, s{sT2}
s_and_b32 s{sROT}, s{sROT}, {7 if g.opt.get('rot', 1) else 0}
s_add_u32 s{sRG2}, s{sT0}, s{sT1}
s_and_b32 s{sT2}, s3, 3
s_add_u32 s{sRG2}, s{sRG2}, s{sT2}
s_lshr_b32 s{sJ2}, s3, 2
s_mul_i32 s{sT0}, s{sJ1}, 43
s_lshr_b32 s{sFS}, s{sT0}, 3
s_add_u32 s{sT0}, s{sT0}, 43
s_lshr_b32 s{sT0}, s{sT0}, 3
s_sub_u32 s{sFN}, s{sT0}, s{sFS}
s_mov_b32 s{sHI}, 0xffff0000
s_and_b32 s{sW}, s{sV}, 3
s_mov_b32 s63, 0
s_cmp_ge_u32 s{sV}, 4
s_cbranch_scc1 L_roleY""")


def srds_common(g):
    g("s_waitcnt lgkmcnt(0)")
    g.srd(SX, 4, 2097152)
    g(f"s_mov_b32 s{sONE}, 1")
def srds_late(g):
    g.srd(SWS, 20, WS_END); g.srd(SOUT, 16, 2097152); g.srd(SDBG, 18, 256)
    g(f"""
s_mul_i32 s{sT0}, s{sJ2}, {TILE}
s_add_u32 s{sT0}, s{sT0}, {WS_W2}
s_add_u32 s{SW2P}, s20, s{sT0}
s_addc_u32 s{SW2P+1}, s21, 0
s_mov_b32 s{SW2P+2}, {TILE}
s_mov_b32 s{SW2P+3}, 0x20000""")

RING = [('B', 0, 4), ('C', 5, 6), ('D', 7, 9), ('D2', 10, 11), ('E1', 12, 13), ('E2', 14, 15)]


XF, vFO, vYA, vVR, vSG = 240, 244, 248, 252, 254
sP = 60

def piece_off(g, d, t):
    g(f"v_lshrrev_b32 v{d}, 2, v{vL}\nv_lshlrev_b32 v{d}, 16, v{d}\nv_and_b32 v{t}, 3, v{vL}\nv_lshl_or_b32 v{d}, v{t}, 4, v{d}")

def poison(g, voff, t):
    for k in range(4): g(f"v_mov_b32 v{t+k}, -1")
    g(f"s_add_u32 s{sT0}, s{sP}, {16*65536}")
    g.vm(f"buffer_store_dwordx4 {vr(t,4)}, v{voff}, {sr(SWS,4)}, s{sP} offen sc1", "poi")
    g.vm(f"buffer_store_dwordx4 {vr(t,4)}, v{voff}, {sr(SWS,4)}, s{sT0} offen sc1", "poi")

def valid_loop(g, base, n, t, reload, cnt=None):
    chk, done = g.lab("vc"), g.lab("vd")
    g(f"s_mov_b32 s{sT3}, 0\n{chk}:")
    g(f"v_max_u32 v{t}, v{base}, v{base+1}")
    for k in range(2, n, 2): g(f"v_max3_u32 v{t}, v{base+k}, v{base+k+1}, v{t}")
    g(f"v_cmp_eq_u32 vcc, -1, v{t}\ns_add_u32 s{sT3}, s{sT3}, 1\ns_nop 0")
    g(f"s_cbranch_vccz {done}\ns_cmp_gt_u32 s{sT3}, 20000\ns_cbranch_scc1 {done}\ns_sleep {g.opt.get('vsleep', 4)}")
    if g.opt.get('stamps'): g(f"s_add_u32 s63, s63, 1")
    q = list(g.vmq); reload(); g.vmq = q
    g(f"s_waitcnt vmcnt(0)\ns_branch {chk}\n{done}:")

def final_addr(g, t):
    g(f"""
v_lshrrev_b32 v{t}, 3, v{vL}
v_and_b32 v{t+1}, 7, v{vL}
v_lshlrev_b32 v{t+1}, 1, v{t+1}
v_xor_b32 v{vYA}, v{t+1}, v{t}
v_lshlrev_b32 v{vYA}, 4, v{vYA}
v_lshl_or_b32 v{vYA}, v{t}, 8, v{vYA}
s_lshl_b32 s{sT0}, s{sV}, 11
v_add_u32 v{vYA}, s{sT0}, v{vYA}
v_xor_b32 v{vYA+1}, 16, v{vYA}
v_add_u32 v{vYA+2}, {2*W2L_SZ}, v{vYA}
v_add_u32 v{vYA+3}, {2*W2L_SZ}, v{vYA+1}
v_bfe_u32 v{vVR}, v{vL}, 4, 1
v_bfe_u32 v{vVR+1}, v{vL}, 3, 1
v_lshl_or_b32 v{vVR}, v{vVR+1}, 1, v{vVR}
v_and_or_b32 v{vVR}, v{t}, 4, v{vVR}
v_and_b32 v{t+1}, 6, v{t+1}
v_xor_b32 v{vVR}, v{vVR}, v{t+1}
v_lshlrev_b32 v{vVR}, 4, v{vVR}
v_lshl_or_b32 v{vVR}, v{t}, 7, v{vVR}
s_lshl_b32 s{sT0}, s{sV}, 10
s_add_u32 s{sT0}, s{sT0}, {VREG}
v_add_u32 v{vVR}, s{sT0}, v{vVR}
v_xor_b32 v{vVR+1}, 16, v{vVR}
v_bfe_u32 v{vSG}, v{vL}, 2, 1
v_lshlrev_b32 v{vSG}, 31, v{vSG}
v_xor_b32 v{vSG}, 1.0, v{vSG}""")


def role_x(g):
    o = g.opt
    XK, F, EA, AY, T, TMP = 16, 144, 176, 208, 224, 248
    vQ, vN, vXO, vXL, vONE, vL16, vSY = 2, 3, 4, 5, 6, 7, 8
    vRD = 10
    vB, vS = 14, 15
    if o.get('xprio'): g(f"s_setprio {o['xprio']}")
    g(f"v_lshrrev_b32 v{vQ}, 4, v{vL}\nv_and_b32 v{vN}, 15, v{vL}\nv_lshlrev_b32 v{vL16}, 4, v{vL}")
    g.x_addr(vXO, vXL, TMP)
    piece_off(g, vRD, TMP)
    g(f"""
s_and_b32 s{sT0}, s{sRG1}, 0x18
s_and_b32 s{sT1}, s{sRG1}, 1
s_lshl2_add_u32 s{sT0}, s{sT1}, s{sT0}
s_bfe_u32 s{sT1}, s{sRG1}, 0x20001
s_add_u32 s{sT0}, s{sT0}, s{sT1}
s_lshl_b32 s{sT0}, s{sT0}, 6
s_lshl2_add_u32 s{sT1}, s{sJ1}, s{sW}
s_lshl_b32 s{sT1}, s{sT1}, 11
s_add_u32 s{sP}, s{sT0}, s{sT1}
s_add_u32 s{sP}, s{sP}, {WS_Z}""")
    g(f"""
s_lshl_b32 s{sT0}, s{sJ1}, 5
s_add_u32 s{sT0}, s{sT0}, s{sW}
s_add_u32 s{sT0}, s{sT0}, 1
v_and_b32 v{TMP}, 7, v{vL}
v_lshl_add_u32 v{TMP}, v{TMP}, 2, s{sT0}
v_cvt_f32_u32 v{vS}, v{TMP}
v_mul_f32 v{vS}, {fbits(1/512)}, v{vS}
s_lshl_b32 s{sT0}, s{sROT}, 6
v_lshl_add_u32 v{TMP}, v{vQ}, 3, s{sT0}
v_cvt_f32_u32 v{TMP}, v{TMP}
v_bfe_u32 v{TMP+1}, v{vL}, 3, 1
v_cvt_f32_u32 v{TMP+1}, v{TMP+1}
v_mul_f32 v{TMP+1}, {fbits(0.25)}, v{TMP+1}
v_fma_f32 v{vB}, v{TMP}, v{vS}, v{TMP+1}
v_fract_f32 v{vB}, v{vB}""")
    npre = o.get('fpre', 1)
    for u in range(npre): g.trig(F + 4 * u, None, vB, vS, [32 * u + i for i in range(8)], TMP)
    srds_common(g)
    g.stamp("karg")
    lz = g.lab("nz")
    g(f"s_cmp_lg_u32 s2, 0\ns_cbranch_scc1 {lz}")
    g.srd(SWS, 20, WS_END)
    for k in range(4): g(f"v_mov_b32 v{T+k}, 0")
    g(f"s_lshl_b32 s{sT0}, s{sW}, 11")
    for k in range(2): g(f"buffer_store_dwordx4 {vr(T,4)}, v{vL16}, {sr(SWS,4)}, s{sT0} offen offset:{1024*k} sc1")
    g(f"{lz}:")
    for i in range(8): g.x_load(i, XK, vXO)
    srds_late(g)
    poison(g, vRD, T + 4)
    g.stamp("xiss")
    for u in range(npre, 8): g.trig(F + 4 * u, None, vB, vS, [32 * u + i for i in range(8)], TMP)
    lz = g.lab("nz")
    g(f"s_cmp_lg_u32 s2, 0\ns_cbranch_scc1 {lz}\ns_waitcnt vmcnt(10)")
    g.s_add1("0", 18)
    g(f"{lz}:")
    def gen_ea(wh, kb):
        g(f"""
s_lshr_b32 s{sT0}, s{sW}, 1
s_xor_b32 s{sT0}, s{sT0}, {wh}
s_lshl1_add_u32 s{sT0}, s{sRG1}, s{sT0}
v_add_u32 v{TMP}, {16*kb}, v{vN}
v_cvt_f32_u32 v{TMP}, v{TMP}
v_mul_f32 v{vS}, {fbits(1/32)}, v{TMP}
v_lshl_add_u32 v{TMP+1}, v{vQ}, 8, s{sT0}
v_cvt_f32_u32 v{TMP+1}, v{TMP+1}
v_mul_f32 v{TMP+1}, {fbits(1/2048)}, v{TMP+1}
v_mul_f32 v{vB}, v{TMP}, v{TMP+1}""")
        e = EA + 16 * wh + 8 * kb
        g.trig(e, e + 4, vB, vS, [16 * (i >> 2) + (i & 3) for i in range(8)], TMP)
    nea = o.get('ea_pre', 2)
    eas = [(0, 0), (0, 1), (1, 0), (1, 1)]
    for wh, kb in eas[:nea]: gen_ea(wh, kb)
    g(f"v_mov_b32 v{vONE}, 1\nv_mov_b32 v9, 0\nv_mov_b32 v{vSY}, {SYNC}")
    g.stamp("gen")
    dbgload = f"buffer_load_dword v9, off, {sr(SDBG,4)}, 0 sc1"
    def hook(k):
        if k == 0: g.stamp("x0")
        if k == 7: g.stamp("xarr")
        if k == 0:
            l = g.lab("x0")
            g(f"s_cmp_lg_u32 s{sV}, 0\ns_cbranch_scc1 {l}\n{dbgload}\n{l}:")
    g.layernorm(XK, XK + 32, T, vXL, hook)
    g.stamp("ln")
    for wh, kb in eas[nea:]: gen_ea(wh, kb)
    g(f"""
v_xor_b32 v{TMP}, v{vN}, v{vQ}
v_lshlrev_b32 v{TMP}, 4, v{TMP}
v_lshl_or_b32 v{TMP}, v{vQ}, 8, v{TMP}
s_lshr_b32 s{sT0}, s{sW}, 1
s_lshl_b32 s{sT0}, s{sT0}, 15
v_add_u32 v{vRD}, s{sT0}, v{TMP}
v_xor_b32 v{vRD+1}, 64, v{vRD}
v_xor_b32 v{vRD+2}, 0x8000, v{vRD}
v_xor_b32 v{vRD+3}, 0x8000, v{vRD+1}""")
    g(f"""
v_lshlrev_b32 v{vXO}, 18, v{vQ}
v_lshl_or_b32 v{vXO}, v{vN}, 2, v{vXO}
v_bfe_u32 v{vB}, v{vL}, 3, 2
v_lshrrev_b32 v{vS}, 2, v{vL}
v_mul_u32_u24 v{vS}, 384, v{vS}
v_and_b32 v{TMP}, 3, v{vL}
v_lshl_add_u32 v{vS}, v{TMP}, 3, v{vS}
v_add_u32 v{vS}, {SLOT0}, v{vS}
s_and_b32 s{sT0}, s{sW}, 1
s_mul_i32 s{sT0}, s{sT0}, 6""")
    vWA = 250
    for fb in range(6):
        g(f"s_add_u32 s{sT1}, s{sT0}, {fb}\nv_xor_b32 v{TMP}, s{sT1}, v{vB}\nv_lshl_add_u32 v{vWA+fb}, v{TMP}, 5, v{vS}")
    g(f"v_bfe_u32 v{vB}, v{vL}, 3, 1\nv_mul_u32_u24 v{vB}, 0x8000, v{vB}\nv_lshl_or_b32 v{vB}, v{vB}, 16, v{vB}")
    l = g.lab("x0")
    g(f"s_cmp_lg_u32 s{sV}, 0\ns_cbranch_scc1 {l}")
    g(f"v_mov_b32 v{TMP}, 0\nv_lshl_add_u32 v{TMP+1}, v{vN}, 2, v{vSY}\nds_write_b32 v{TMP+1}, v{TMP}")
    g.spin_global(dbgload, None, 9, True, 4)
    g(f"{l}:")
    g(f"s_and_b32 s{sT0}, s{sW}, 1\ns_cmp_eq_u32 s{sT0}, 0\ns_cselect_b32 s{sT2}, 0x80008000, 0")
    g.stamp("preA")
    g.wait(vm='all', ds='all'); g.bar()
    g.stamp("barA")
    def rd(u):
        for b in range(2):
            g.ds(f"ds_read_b128 {vr(XK+8*u+4*b,4)}, v{vRD+(u&1)} offset:{16384*b+1024*u}", f"a{u}")
        for b in range(2):
            g.ds(f"ds_read_b128 {vr(T+8*(u%3)+4*b,4)}, v{vRD+2+(u&1)} offset:{16384*b+1024*u}", f"a{u}")
    rd(0); rd(1)
    for u in range(16):
        if u + 2 < 16: rd(u + 2)
        g.wait(ds=f"a{u}")
        if u == 15:
            g.stamp("preB")
            g.bar()
        f = F + 4 * (u & 7)
        for b in range(2): g.mfma(AY + 4 * b, XK + 8 * u + 4 * b, f, u == 0)
        for b in range(2): g.mfma(AY + 8 + 4 * b, T + 8 * (u % 3) + 4 * b, f, u == 0)
        if u < 8:
            for k in range(4): g(f"v_xor_b32 v{f+k}, s{sT2}, v{f+k}")
    g.stamp("barB")
    YF, YP, ZA, ZP = T, T + 8, F, T + 16
    for wh in range(2):
        for e in range(4):
            a = AY + 8 * wh + 2 * e
            g(f"v_cvt_pk_bf16_f32 v{YF+4*wh+e}, v{a}, v{a+1}")
    for wh in range(2):
        for kb in range(2): g.mfma(ZA + 8 * wh + 4 * kb, EA + 16 * wh + 8 * kb, YF + 4 * wh, True)
        for k in range(4): g(f"v_xor_b32_dpp v{YP+4*wh+k}, v{YF+4*wh+k}, v{vB} {DPP8}")
    for kb in range(2):
        for wh in range(2): g.mfma(ZA + 8 * wh + 4 * kb, EA + 16 * wh + 8 * kb + 4, YP + 4 * wh)
    AC, WF, NB, DEP = 160, 208, 8, o.get('dep', 6)
    bars = {6 * first: name for name, first, _ in RING if name != 'B'}
    base = [SLOT0]
    fwload = f"buffer_load_dword v248, v9, {sr(SWS,4)}, 0 offen sc1"
    fw_issue, fw_check = o.get('fw', ('C', 'D'))
    def fw_go():
        l = g.lab("x0")
        g(f"s_cmp_lg_u32 s{sV}, 0\ns_cbranch_scc1 {l}")
        g(f"v_lshlrev_b32 v9, 7, v{vN}\nv_add_u32 v9, {FW}, v9\n{fwload}\n{l}:")
    def rdw(t):
        c, fb = divmod(t, 6)
        if t in bars:
            name = bars[t]
            if name == fw_check:
                l = g.lab("x0")
                g(f"s_cmp_lg_u32 s{sV}, 0\ns_cbranch_scc1 {l}")
                g.spin_global(fwload, None, 248, True, 16)
                g(f"{l}:")
            g.stamp("pre" + name)
            g.bar()
            g.stamp("bar" + name)
            if name == fw_issue: fw_go()
        off = slot(c) - base[0]
        if fb == 0 and (off < 0 or off + 6144 > 65535):
            for k in range(6): g(f"v_add_u32 v{vWA+k}, {off & 0xffffffff}, v{vWA+k}")
            base[0] = slot(c); off = 0
        for i in range(2):
            g.ds(f"ds_read_b64_tr_b16 {vr(WF+4*(t%NB)+2*i,2)}, v{vWA+fb} offset:{off+6144*i}", f"w{t}")
    if fw_issue == 'B': fw_go()
    for t in range(DEP): rdw(t)
    l1, l2 = g.lab("zs"), g.lab("ze")
    g(f"s_cmp_ge_u32 s{sW}, 2\ns_cbranch_scc1 {l1}")
    for k in range(8): g(f"v_cvt_pk_bf16_f32 v{ZP+k}, v{ZA+k}, v{ZA+8+k}")
    g(f"s_branch {l2}\n{l1}:")
    for k in range(8): g(f"v_cvt_pk_bf16_f32 v{ZP+k}, v{ZA+8+k}, v{ZA+k}")
    g(f"{l2}:")
    for t in range(96):
        if t + DEP < 96: rdw(t + DEP)
        g.wait(ds=f"w{t}")
        if t == 95:
            g.stamp("preF")
            g.bar()
        u, fb = divmod(t, 6)
        for b in range(2): g.mfma(AC + 24 * b + 4 * fb, WF + 4 * (t % NB), XK + 8 * u + 4 * b, u == 0)
        if t < 8:
            g(f"s_add_u32 s{sT0}, s{sP}, {(16*(t>>2) + (t&3)) * 65536}")
            g.vm(f"buffer_store_dword v{ZP+t}, v{vXO}, {sr(SWS,4)}, s{sT0} offen sc1", "z")
            if t == 7: g.stamp("zst")
        if t == 90:
            g(f"""
s_mul_i32 s{sA}, s{sRG1}, {TILE}
s_and_b32 s{sT0}, s{sW}, 1
s_mul_i32 s{sT0}, s{sT0}, 3
s_add_u32 s{sT1}, s{sT0}, s{sFS}
s_lshl_b32 s{sT1}, s{sT1}, 12""")
        if t == 91:
            g(f"""
s_add_u32 s{sA}, s{sA}, s{sT1}
s_lshr_b32 s{sT1}, s{sW}, 1
s_lshl_b32 s{sT1}, s{sT1}, 11
s_add_u32 s{sA}, s{sA}, s{sT1}
s_add_u32 s{sA}, s{sA}, {WS_H}""")
        if t == 92:
            g(f"""
s_add_u32 s{sT2}, s{sA}, 8192
s_add_u32 s{sT0}, s{sT0}, 2
s_cmp_lt_u32 s{sT0}, s{sFN}
s_cselect_b32 s{sT2}, s{sT2}, {WS_END}
s_add_u32 s{sT1}, s{sA}, 4096""")
    g.stamp("gemm1")
    HP = 16
    for ks in range(3):
        for b in range(2):
            d = HP + 8 * ks + 4 * b; a = AC + 24 * b + 8 * ks
            for e in range(4): g(f"v_cvt_pk_bf16_f32 v{d+e}, v{a+2*e}, v{a+2*e+1}")
            for e in range(4): g(f"v_pk_max_i16 v{d+e}, v{d+e}, 0")
            g.vm(f"buffer_store_dwordx4 {vr(d,4)}, v{vL16}, {sr(SWS,4)}, s{(sA, sT1, sT2)[ks]} offen offset:{1024*b} sc1", "h")
    g.stamp("hst")
    if o.get('xprio'): g("s_setprio 0")
    g(f"s_mul_i32 s{sA}, s{sW}, {11*4096}\ns_mul_i32 s{sB}, s{sW}, {W2L_SZ}")
    def w2l(t):
        g(f"s_add_u32 m0, s{sB}, {4096*t}\ns_add_u32 s{sT0}, s{sA}, {4096*t}")
        for b in range(4):
            g.vm(f"buffer_load_dwordx4 v{vL16}, {sr(SW2P,4)}, s{sT0} offen offset:{1024*b} sc1 lds", "w2l")
    UF, GM, EM, DA, TF = 16, 80, 112, 144, 208
    def gen_g(db, u):
        g(f"""
s_lshl_b32 s{sT0}, s{sJ2}, 5
s_add_u32 s{sT0}, s{sT0}, {16*db}
v_add_u32 v{TMP}, s{sT0}, v{vN}
v_cvt_f32_u32 v{TMP}, v{TMP}
v_mul_f32 v{vS}, {fbits(1/128)}, v{TMP}
s_add_u32 s{sT0}, s{sW}, {128*u+1}
v_lshl_add_u32 v{TMP+1}, v{vQ}, 5, s{sT0}
v_cvt_f32_u32 v{TMP+1}, v{TMP+1}
v_mul_f32 v{TMP+1}, {fbits(1/512)}, v{TMP+1}
v_mul_f32 v{vB}, v{TMP}, v{TMP+1}""")
        e = GM + 16 * u + 8 * db
        g.trig(e, e + 4, vB, vS, list(range(8)), TMP)
    def gen_e(s2b, sb):
        g(f"""
s_lshl1_add_u32 s{sT0}, s{sRG2}, {1024*sb + s2b}
v_lshl_add_u32 v{TMP}, v{vN}, 6, s{sT0}
v_cvt_f32_u32 v{TMP}, v{TMP}
v_mul_f32 v{vS}, {fbits(1/512)}, v{TMP}
v_cvt_f32_u32 v{TMP+1}, v{vQ}
v_mul_f32 v{TMP+1}, {fbits(1/2048)}, v{TMP+1}
v_mul_f32 v{vB}, v{TMP}, v{TMP+1}""")
        e = EM + 16 * s2b + 8 * sb
        g.trig(e, e + 4, vB, vS, list(range(8)), TMP, negsin=True)
    nb4 = o.get('w2l_pre', 1)
    for t in range(nb4): w2l(t)
    gens = [lambda db=db, u=u: gen_g(db, u) for db in range(2) for u in range(2)] + [lambda a=a, b=b: gen_e(a, b) for a in range(2) for b in range(2)]
    ng = o.get('gen_pre', 6)
    for f in gens[:ng]: f()
    g.stamp("cgen")
    g.wait(vm="h")
    l = g.lab("hf")
    g(f"s_mov_b64 exec, 1\nds_add_rtn_u32 v{TMP}, v{vSY}, v{vONE} offset:{CNT_H}\ns_waitcnt lgkmcnt(0)\nv_cmp_eq_u32 vcc, 3, v{TMP}\ns_mov_b64 exec, -1")
    g(f"s_cbranch_vccz {l}\ns_lshl_b32 s{sT0}, s{sRG1}, 7\ns_add_u32 s{sT0}, s{sT0}, {FH}")
    g.s_add1(f"s{sT0}")
    g(f"{l}:")
    g.stamp("hflag")
    for t in range(nb4, 7): w2l(t)
    g.final_xload(XF, vFO, TMP)
    g(f"s_lshl2_add_u32 s{sA}, s{sRG2}, s{sW}\ns_lshl_b32 s{sA}, s{sA}, 14\ns_add_u32 s{sA}, s{sA}, {WS_U}")
    def uload(m0):
        for mp in range(m0, 4):
            g(f"s_add_u32 s{sT0}, s{sA}, {4096*mp}")
            for k in range(4):
                g.vm(f"buffer_load_dwordx4 {vr(UF+16*mp+4*k,4)}, v{vL16}, {sr(SWS,4)}, s{sT0} offen offset:{1024*k} sc1", f"u{mp}")
    if o.get('uearly', 0): uload(0)
    for f in gens[ng:]: f()
    g.wait(vm="w2l")
    g.stamp("w2l")
    g(f"s_lshl_b32 s{sT0}, s{sW}, 2\nv_add_u32 v{TMP}, s{sT0}, v{vSY}\nds_write_b32 v{TMP}, v{vONE} offset:{WRD_W2}")
    if not o.get('uearly', 0): uload(0)
    vVA = 245
    g(f"""
v_bfe_u32 v{TMP}, v{vL}, 1, 1
v_and_b32 v{TMP+1}, 1, v{vL}
v_lshl_or_b32 v{TMP}, v{TMP+1}, 1, v{TMP}
v_and_or_b32 v{TMP}, v{vL}, 4, v{TMP}
v_xor_b32 v{TMP}, v{TMP}, v{vQ}
v_lshlrev_b32 v{TMP}, 4, v{TMP}
v_lshl_or_b32 v{TMP}, v{vN}, 7, v{TMP}
s_lshl_b32 s{sT0}, s{sW}, 13
s_add_u32 s{sT0}, s{sT0}, {VREG}
v_add_u32 v{vVA}, s{sT0}, v{TMP}
v_xor_b32 v{vVA+1}, 64, v{vVA}""")
    final_addr(g, 10)
    def st1(mp):
        g.wait(vm=f"u{mp}")
        valid_loop(g, UF + 16 * mp, 16, 12, lambda: uload(mp))
        if mp == 0: g.stamp("u0")
        D = DA + 32 * (mp & 1)
        for u in range(2):
            for m in range(2):
                for db in range(2):
                    for cs in range(2):
                        g.mfma(D + 16 * m + 8 * db + 4 * cs, UF + 16 * mp + 8 * m + 4 * u, GM + 16 * u + 8 * db + 4 * cs, u == 0)
    def comb(mp):
        D = DA + 32 * (mp & 1)
        for m in range(2):
            for db in range(2):
                c, s = D + 16 * m + 8 * db, D + 16 * m + 8 * db + 4
                for s2b in range(2):
                    g(f"v_sub_f32 v{c+2*s2b}, v{c+2*s2b}, v{s+2*s2b+1}\nv_add_f32 v{s+2*s2b}, v{s+2*s2b}, v{c+2*s2b+1}")
        for s2b in range(2):
            for db in range(2):
                for part in range(2):
                    a = D + 8 * db + 4 * part + 2 * s2b
                    g(f"v_cvt_pk_bf16_f32 v{TF+16*s2b+8*db+4*part+mp}, v{a}, v{a+16}")
    st1(0)
    for mp in range(1, 4): st1(mp); comb(mp - 1)
    comb(3)
    VA = 16
    for part in range(2):
        for s2b in range(2):
            for sb in range(2):
                for db in range(2):
                    g.mfma(VA + 16 * s2b + 8 * sb + 4 * db, TF + 16 * s2b + 8 * db + 4 * part, EM + 16 * s2b + 8 * sb + 4 * part, part == 0)
    for mb in range(4):
        for db in range(2):
            g.ds(f"ds_write_b128 v{vVA+db}, {vr(VA+8*mb+4*db,4)} offset:{2048*mb}")
    g.stamp("cdone")
    g("s_branch L_final")


def role_y(g):
    o = g.opt
    BM, R, TMP = 16, 96, 240
    vQ, vN, vXO, vXL, vONE, vL16, vSY = 2, 3, 4, 5, 6, 7, 13
    vW1 = 8
    vPO = 11
    vB, vS = 14, 15
    g("L_roleY:")
    g(f"v_lshrrev_b32 v{vQ}, 4, v{vL}\nv_and_b32 v{vN}, 15, v{vL}")
    g.x_addr(vXO, vXL, TMP)
    g(f"v_mov_b32 v{vONE}, 1\nv_lshlrev_b32 v{vL16}, 4, v{vL}\nv_mov_b32 v{vSY}, {SYNC}")
    g(f"s_lshl_b32 s{sT1}, s{sFN}, 1\ns_lshl_b32 s{sT2}, s{sW}, 3")
    for t in range(3):
        g(f"""
v_add_u32 v{TMP}, {64*t}, v{vL}
v_mul_u32_u24 v{TMP+1}, 43691, v{TMP}
v_lshrrev_b32 v{TMP+1}, 20, v{TMP+1}
v_mul_u32_u24 v{TMP+2}, 24, v{TMP+1}
v_sub_u32 v{TMP}, v{TMP}, v{TMP+2}
v_add_u32 v{TMP+1}, s{sT2}, v{TMP+1}
v_bfe_u32 v{TMP+2}, v{TMP+1}, 2, 2
v_and_b32 v{TMP+3}, 3, v{TMP+1}
v_lshl_or_b32 v{TMP+2}, v{TMP+2}, 3, v{TMP+3}
v_lshrrev_b32 v{TMP+3}, 4, v{TMP+1}
v_lshl_or_b32 v{TMP+2}, v{TMP+3}, 2, v{TMP+2}
v_mul_u32_u24 v{TMP+2}, 2752, v{TMP+2}
v_bfe_u32 v{TMP+1}, v{TMP+1}, 1, 2
v_lshrrev_b32 v{TMP+3}, 1, v{TMP}
v_xor_b32 v{TMP+1}, v{TMP+1}, v{TMP+3}
v_cmp_gt_u32 vcc, s{sT1}, v{TMP+1}
v_lshl_add_u32 v{TMP+2}, v{TMP+1}, 5, v{TMP+2}
v_and_b32 v{TMP}, 1, v{TMP}
v_lshl_add_u32 v{TMP+2}, v{TMP}, 4, v{TMP+2}
v_subrev_u32 v{TMP+2}, {1024*t}, v{TMP+2}
v_cndmask_b32 v{vW1+t}, 2.0, v{TMP+2}, vcc""")
    vC2, vWW = 88, 89
    g(f"v_lshrrev_b32 v{TMP}, 2, v{vL}\nv_and_b32 v{TMP+1}, 3, v{vL}\nv_lshlrev_b32 v{vC2}, 10, v{TMP}\nv_lshl_or_b32 v{vC2}, v{TMP+1}, 4, v{vC2}")
    g(f"v_lshlrev_b32 v12, 6, v{TMP}\nv_lshl_or_b32 v12, v{TMP+1}, 3, v12\ns_mul_i32 s{sB}, s{sW}, 2560\ns_add_u32 s{sB}, s{sB}, {MISC}\nv_add_u32 v12, s{sB}, v12")
    for t in range(3):
        g(f"""
v_add_u32 v{TMP}, {64*t}, v{vL}
v_mul_u32_u24 v{TMP+1}, 52429, v{TMP}
v_lshrrev_b32 v{TMP+1}, 18, v{TMP+1}
v_mul_u32_u24 v{TMP+1}, {16448-80}, v{TMP+1}
v_add_u32 v{vWW+t}, v{TMP+1}, v{vL16}""")
    piece_off(g, vPO, TMP)
    g(f"""
s_lshl_b32 s{sP}, s{sW}, 14
s_lshr_b32 s{sT0}, s{sRG2}, 2
s_lshl_b32 s{sT0}, s{sT0}, 11
s_add_u32 s{sP}, s{sP}, s{sT0}
s_and_b32 s{sT0}, s{sRG2}, 3
s_lshl2_add_u32 s{sT0}, s{sJ2}, s{sT0}
s_lshl_b32 s{sT0}, s{sT0}, 6
s_add_u32 s{sP}, s{sP}, s{sT0}
s_add_u32 s{sP}, s{sP}, {WS_U}""")
    def bm_gen():
        for mb in range(2):
            g(f"v_add_u32 v{TMP}, {16*mb}, v{vN}\nv_cvt_f32_u32 v{TMP}, v{TMP}\nv_mul_f32 v{vS}, {fbits(1/64)}, v{TMP}")
            g(f"v_cvt_f32_u32 v{TMP+1}, v{vQ}\nv_mul_f32 v{TMP+1}, 4.0, v{TMP+1}\nv_mul_f32 v{vB}, v{vS}, v{TMP+1}")
            g.trig(BM + 8 * mb, BM + 32 + 8 * mb, vB, vS, [16 * (i >> 2) + (i & 3) for i in range(8)], TMP)
    def bm_xor():
        g(f"v_and_b32 v{TMP}, 1, v{vL}\nv_mul_u32_u24 v{TMP}, 0x8000, v{TMP}\nv_lshl_or_b32 v{TMP}, v{TMP}, 16, v{TMP}\ns_brev_b32 s{sT0}, 1")
        for cs in range(2):
            for mb in range(2):
                b = BM + 32 * cs + 8 * mb
                for k in range(4): g(f"v_xor_b32 v{b+4+k}, v{TMP}, v{b+k}")
                for k in range(8): g(f"v_xor_b32 v{b+16+k}, s{sT0}, v{b+k}")
    bm_gen()
    srds_common(g)
    g.srd(SW1, 12, 512 * 2752); g.srd(SW2, 14, 1376 * 1024)
    srds_late(g)
    g.stamp("karg")
    g(f"""
s_lshr_b32 s{sT0}, s2, 2
s_lshl_b32 s{sT0}, s{sT0}, 15
s_and_b32 s{sT1}, s2, 3
s_lshl2_add_u32 s{sT1}, s{sT1}, s{sW}
s_lshl_b32 s{sT1}, s{sT1}, 6
s_add_u32 s{sT0}, s{sT0}, s{sT1}
s_mov_b32 m0, s{sB}""")
    g.vm(f"buffer_load_dwordx4 v{vC2}, {sr(SW2,4)}, s{sT0} offen lds", "c2")
    g(f"s_add_u32 s{sT0}, s{sT0}, {16384-1024}")
    g.vm(f"buffer_load_dwordx4 v{vC2}, {sr(SW2,4)}, s{sT0} offen offset:1024 lds", "c2")
    poison(g, vPO, 92)
    bm_xor()
    for i in range(8): g.x_load(i, R, vXO)
    g.stamp("xiss")
    RL = 80
    g.wait(vm="c2")
    for nbl in range(2):
        for i in range(2):
            g.ds(f"ds_read_b64_tr_b16 {vr(RL+4*nbl+2*i,2)}, v12 offset:{1024*i+32*nbl}", "rl")
    g(f"""
s_and_b32 s{sT0}, s2, 1
s_lshl2_add_u32 s{sT0}, s{sT0}, s{sW}
s_mul_i32 s{sT0}, s{sT0}, {TILE}
s_lshr_b32 s{sT1}, s2, 1
s_lshl_b32 s{sT1}, s{sT1}, 11
s_add_u32 s{sT0}, s{sT0}, s{sT1}
s_add_u32 s{sT0}, s{sT0}, {WS_W2}
s_cmp_lt_u32 s2, 172
s_cselect_b32 s{sT0}, s{sT0}, {WS_END}
s_mul_i32 s{sA}, s{sW}, 3072
s_lshl_b32 s3, s{sFS}, 6""")
    g.wait(ds="rl")
    for nbl in range(2):
        g.vm(f"buffer_store_dwordx4 {vr(RL+4*nbl,4)}, v{vL16}, {sr(SWS,4)}, s{sT0} offen offset:{1024*nbl} sc1", "rl")
    def chunk(c):
        g(f"s_lshl1_add_u32 s{sT0}, s{sROT}, {c}\ns_and_b32 s{sT0}, s{sT0}, 15\ns_mul_i32 s{sT0}, s{sT0}, {32*2752}\ns_add_u32 m0, s{sA}, {slot(c)}\ns_add_u32 s{sT0}, s{sT0}, s3")
        for t in range(3):
            g.vm(f"buffer_load_dwordx4 v{vW1+t}, {sr(SW1,4)}, s{sT0} offen offset:{1024*t} lds", f"c{c}_")
    def wtile():
        g(f"""
s_cmp_ge_u32 s{sW}, 2
s_cselect_b32 s{SWW}, s8, s6
s_cselect_b32 s{SWW+1}, s9, s7
s_mov_b32 s{SWW+2}, {2048*514}
s_mov_b32 s{SWW+3}, 0x20000
s_mul_i32 s{sT0}, s{sRG2}, 514
s_add_u32 s{sT0}, s{sT0}, 2
s_and_b32 s{sT0}, s{sT0}, -16
s_lshl_b32 s{sT1}, s{sJ2}, 6
s_add_u32 s{sT0}, s{sT0}, s{sT1}
s_and_b32 s{sT1}, s{sW}, 1
s_mul_i32 s{sT1}, s{sT1}, {32*16448}
s_add_u32 s{sT0}, s{sT0}, s{sT1}
s_mov_b32 m0, s{sB}""")
        for t in range(3):
            if t == 2: g("s_mov_b32 exec_hi, 0")
            g.vm(f"buffer_load_dwordx4 v{vWW+t}, {sr(SWW,4)}, s{sT0} offen offset:{1024*t} lds", "ww")
        g("s_mov_b32 exec_hi, -1")
    sched = o.get('ysched', {-1: [0, 1], 7: ['w']})
    done = []
    def hook(k):
        if k == 0: g.stamp("x0")
        if k == 7: g.stamp("xarr")
        for c in sched.get(k, []):
            done.append(c)
            wtile() if c == 'w' else chunk(c)
    hook(-1)
    g.stamp("gen")
    g.layernorm(R, R + 32, 200, vXL, hook)
    g.stamp("ln")
    g.wait(vm="rl", ds='all')
    g.stamp("preA")
    g.bar()
    g.stamp("barA")
    l = g.lab("y1")
    g(f"s_cmp_lg_u32 s{sV}, 5\ns_cbranch_scc1 {l}\ns_and_b32 s{sT0}, s2, 15\ns_lshl_b32 s{sT0}, s{sT0}, 7\ns_add_u32 s{sT0}, s{sT0}, {FW}")
    g.s_add1(f"s{sT0}")
    g(f"{l}:")
    for c in list(range(7)) + ['w']:
        if c not in done: wtile() if c == 'w' else chunk(c)
    g(f"""
v_mul_u32_u24 v12, 320, v{vQ}
v_and_b32 v{TMP}, 7, v{vL}
v_lshl_add_u32 v12, v{TMP}, 3, v12
s_lshl1_add_u32 s{sT2}, s{sRG2}, 2
s_and_b32 s{sT2}, s{sT2}, 15
s_lshl1_add_u32 s{sT2}, s{sW}, s{sT2}
s_add_u32 s{sT2}, s{sT2}, {MISC}
v_add_u32 v12, s{sT2}, v12""")
    ring = {name: last for name, _, last in RING}
    g.wait(vm=f"c{ring['B']}_")
    g.stamp("preB")
    g.bar()
    g.stamp("barB")
    for c in range(7, 12): chunk(c)
    g.stamp("c11")
    g.wait(vm=[f"c{ring['C']}_", "ww"]); g.bar()
    chunk(12); chunk(13)
    WR = 80
    for k in range(32):
        g.ds(f"ds_read_u16 v{WR+k}, v12 offset:{5120*(k>>4) + 80*(16*((k>>2)&3) + (k&3))}", "wr")
    g.wait(vm=f"c{ring['D']}_"); g.bar()
    chunk(14); chunk(15)
    ZF, ZP, P, QF, QP, D, T2 = 112, 120, 128, 144, 152, 160, 176
    g(f"""
v_mov_b32 v{T2}, 1.0
v_and_b32 v{T2+1}, 7, v{vL}
s_lshl2_add_u32 s{sT0}, s{sJ2}, s{sW}
v_lshl_add_u32 v{T2+1}, s{sT0}, 3, v{T2+1}
v_cmp_ne_u32 vcc, 0xff, v{T2+1}
v_bfe_u32 v{T2+2}, v{vL}, 3, 1
v_cndmask_b32 v{T2}, 0.5, v{T2}, vcc
v_mul_f32 v{T2}, {fbits(2.0**-19)}, v{T2}
v_mul_u32_u24 v{T2+2}, 0x8000, v{T2+2}
v_lshl_or_b32 v{vB}, v{T2+2}, 16, v{T2+2}
v_xor_b32 v{vS}, 0x80008000, v{vB}
v_and_b32 v{T2+2}, 0x80000000, v{vS}
v_xor_b32 v{T2+1}, v{T2+2}, v{T2}
v_lshlrev_b32 v8, 2, v{vL}
s_lshl_b32 s3, s{sRG2}, 16
s_lshl_b32 s{sT0}, s{sT0}, 11
s_add_u32 s3, s3, s{sT0}
s_add_u32 s3, s3, {WS_Z}
s_mul_i32 s{sA}, s{sW}, {11*4096}""")
    W2R = 192
    def w2r(t):
        g(f"s_add_u32 s{sT0}, s{sA}, {4096*(7+t)}")
        for b in range(4):
            g.vm(f"buffer_load_dwordx4 {vr(W2R+16*t+4*b,4)}, v{vL16}, {sr(SW2P,4)}, s{sT0} offen offset:{1024*b} sc1", "w2r")
    def zload():
        for k in range(8):
            g.vm(f"buffer_load_dword v{ZF+k}, v8, {sr(SWS,4)}, s3 offen offset:{256*k} sc1", "zl")
    late = o.get('ylate', {'D2': [0], 'E1': ['z', 1], 'E2': [2, 3]})
    def after(name):
        for c in late.get(name, []): zload() if c == 'z' else w2r(c)
    after('D')
    g.wait(ds="wr")
    for k in range(32): g(f"v_lshlrev_b32 v{WR+k}, 16, v{WR+k}\nv_mul_f32 v{WR+k}, v{T2+(k>>4)}, v{WR+k}")
    g.wait(vm=f"c{ring['D2']}_"); g.bar()
    after('D2')
    g(f"""
s_lshl_b32 s{sT0}, s{sW}, 11
s_add_u32 s{sT0}, s{sT0}, {BOUNCE}
v_lshlrev_b32 v{T2}, 5, v{vN}
v_lshl_or_b32 v{T2}, v{vQ}, 3, v{T2}
v_add_u32 v{T2}, s{sT0}, v{T2}
v_add_u32 v{T2+1}, s{sT0}, v{vL16}
s_mul_i32 s{sT0}, s{sRG2}, {TILE}
s_add_u32 s{sT0}, s{sT0}, {WS_H}
s_add_u32 s{SH}, s20, s{sT0}
s_addc_u32 s{SH+1}, s21, 0
s_mov_b32 s{SH+2}, {TILE}
s_mov_b32 s{SH+3}, 0x20000""")
    g.wait(vm=f"c{ring['E1']}_"); g.bar()
    after('E1')
    g.wait(vm=f"c{ring['E2']}_"); g.bar()
    after('E2')
    g.stamp("preF")
    g.bar()
    g.stamp("barF")
    if o.get('yprio', 1): g(f"s_setprio {o.get('yprio', 1)}")
    after('F')
    g.wait(vm="zl")
    valid_loop(g, ZF, 8, T2 + 2, zload)
    g.stamp("zld")
    for u in range(2):
        for mb in range(4):
            g.mfma(P + 4 * mb, BM + 8 * mb + 4 * u, ZF + 4 * u, u == 0)
            g(f"v_xor_b32_dpp v{ZP+4*u+mb}, v{ZF+4*u+mb}, v{vB} {DPP8}")
    for mb in range(4):
        for u in range(2): g.mfma(P + 4 * mb, BM + 32 + 8 * mb + 4 * u, ZP + 4 * u)
    for mb in range(4):
        for k in range(4 * mb, 4 * mb + 4): g(f"v_mul_f32 v{D+k}, v{P+k}, v{WR+k}")
        for k in range(4 * mb, 4 * mb + 4): g(f"v_fmac_f32_dpp v{D+k}, v{P+k}, v{WR+16+k} {DPP8}")
        for k in range(2 * mb, 2 * mb + 2): g(f"v_cvt_pk_bf16_f32 v{QF+k}, v{D+2*k}, v{D+2*k+1}")
    for u in range(2):
        for nb in range(4):
            g.mfma(P + 4 * nb, QF + 4 * u, BM + 8 * nb + 4 * u, u == 0)
            g(f"v_xor_b32_dpp v{QP+4*u+nb}, v{QF+4*u+nb}, v{vS} {DPP8}")
    for nb in range(4):
        for u in range(2): g.mfma(P + 4 * nb, QP + 4 * u, BM + 32 + 8 * nb + 4 * u)
    for nb in range(4):
        g(f"v_cvt_pk_bf16_f32 v{D+2*nb}, v{P+4*nb}, v{P+4*nb+1}\nv_cvt_pk_bf16_f32 v{D+2*nb+1}, v{P+4*nb+2}, v{P+4*nb+3}")
        g.ds(f"ds_write_b64 v{T2}, {vr(D+2*nb,2)} offset:{512*nb}")
    US = 80
    for t in range(2): g.ds(f"ds_read_b128 {vr(US+4*t,4)}, v{T2+1} offset:{1024*t}", f"b{t}")
    g(f"s_add_u32 s{sT2}, s{sP}, {16*65536}")
    for t in range(2):
        g.wait(ds=f"b{t}")
        g.vm(f"buffer_store_dwordx4 {vr(US+4*t,4)}, v{vPO}, {sr(SWS,4)}, s{(sP, sT2)[t]} offen sc1", "us")
    g.stamp("ust")
    after('U')
    g(f"""
s_mul_i32 s{sT0}, s{sW}, {W2L_SZ}
v_add_u32 v{vXO}, s{sT0}, v{vL16}
v_and_b32 v{vXL}, 7, v{vL}
v_xor_b32 v{vXL}, v{vXL}, v{vQ}
v_lshlrev_b32 v{vXL}, 4, v{vXL}
v_lshl_or_b32 v{vXL}, v{vN}, 8, v{vXL}
v_add_u32 v{vXL}, s{sT0}, v{vXL}
v_xor_b32 v{vB}, 64, v{vXL}
s_lshl_b32 s{sT0}, s{sW}, 2
v_add_u32 v{vS}, s{sT0}, v{vSY}""")
    l, l2 = g.lab("y0"), g.lab("y0e")
    g(f"s_setprio 0\ns_cmp_lg_u32 s{sV}, 4\ns_cbranch_scc1 {l}")
    g(f"s_lshl_b32 s{sT0}, s{sRG2}, 7\ns_add_u32 s{sT0}, s{sT0}, {FH}")
    g.spin_scalar(f"s{sT0}", 8)
    g(f"ds_write_b32 v{vSY}, v{vONE} offset:{WRD_H}\ns_branch {l2}\n{l}:")
    g.spin_lds(WRD_H, vSY, T2)
    g(f"{l2}:")
    if o.get('yprio', 1): g(f"s_setprio {o.get('yprio', 1)}")
    g.stamp("hflag")
    AC, LF, HB, HD = 16, 80, 112, 5
    order = [7, 8, 9, 10, 0, 1, 2, 3, 4, 5, 6]
    def hl(n):
        g(f"s_add_u32 s{sT0}, s{sA}, {4096*order[n]}")
        for b in range(4):
            g.vm(f"buffer_load_dwordx4 {vr(HB+16*(n%HD)+4*b,4)}, v{vL16}, {sr(SH,4)}, s{sT0} offen offset:{1024*b} sc1", f"h{n}")
    for n in range(HD): hl(n)
    def lrd(n):
        for b in range(4):
            g.ds(f"ds_read_b128 {vr(LF+16*(n&1)+4*b,4)}, v{vXO} offset:{4096*order[n]+1024*b}", f"l{n}")
    for n in range(11):
        if n == 3: g.spin_lds(WRD_W2, vS, 8)
        if 3 <= n < 10: lrd(n + 1)
        g.wait(vm=f"h{n}", ds=(f"l{n}" if n >= 4 else None))
        g.stamp(f"h{n}")
        wf = W2R + 16 * n if n < 4 else LF + 16 * (n & 1)
        for mb in range(4):
            for nb in range(4): g.mfma(AC + 16 * mb + 4 * nb, wf + 4 * nb, HB + 16 * (n % HD) + 4 * mb, n == 0)
            if n == 10 and mb:
                for nb in range(4):
                    g.ds(f"ds_write_b128 v{(vXL, vB)[nb&1]}, {vr(AC+16*(mb-1)+4*nb,4)} offset:{4096*(mb-1)+128*(nb>>1)}")
        if n + HD < 11: hl(n + HD)
        if n == 5: g.final_xload(XF, vFO, 8)
        if n == 6: final_addr(g, 8)
    for nb in range(4):
        g.ds(f"ds_write_b128 v{(vXL, vB)[nb&1]}, {vr(AC+48+4*nb,4)} offset:{4096*3+128*(nb>>1)}")
    g.stamp("g2done")
    g("s_setprio 0")


def final(g):
    g("L_final:")
    XU = 160
    g("s_waitcnt vmcnt(0)")
    for k in range(4): g(f"v_lshlrev_b32 v{XU+2*k}, 16, v{XF+k}\nv_and_b32 v{XU+2*k+1}, s{sHI}, v{XF+k}")
    g("s_waitcnt lgkmcnt(0)\ns_barrier")
    if g.opt.get('stamps'): g(f"s_memtime s[4:5]")
    YP, VP = 96, 128
    for w in range(4):
        for i in range(2):
            g.ds(f"ds_read_b128 {vr(YP+8*w+4*i,4)}, v{vYA+i+2*(w>>1)} offset:{W2L_SZ*(w&1)}", f"y{w}")
    for w in (0, 2, 1, 3):
        for i in range(2):
            g.ds(f"ds_read_b128 {vr(VP+8*w+4*i,4)}, v{vVR+i} offset:{8192*w}", f"v{w}")
    g.wait(ds="y1")
    for k in range(4): g(f"v_pk_add_f32 {vr(YP+2*k,2)}, {vr(YP+2*k,2)}, {vr(YP+8+2*k,2)}")
    g.wait(ds="y3")
    for k in range(4): g(f"v_pk_add_f32 {vr(YP+16+2*k,2)}, {vr(YP+16+2*k,2)}, {vr(YP+24+2*k,2)}")
    for k in range(4): g(f"v_pk_add_f32 {vr(YP+2*k,2)}, {vr(YP+2*k,2)}, {vr(YP+16+2*k,2)}")
    E = YP + 8
    for k in range(8): g(f"v_mul_f32 v{E+k}, {fbits(-1.4426950408889634)}, v{YP+k}")
    for k in range(8): g(f"v_exp_f32 v{E+k}, v{E+k}")
    for k in range(8): g(f"v_add_f32 v{E+k}, 1.0, v{E+k}")
    for k in range(8): g(f"v_rcp_f32 v{E+k}, v{E+k}")
    g.wait(ds="v2")
    for k in range(4): g(f"v_pk_add_f32 {vr(VP+2*k,2)}, {vr(VP+2*k,2)}, {vr(VP+16+2*k,2)}")
    g.wait(ds="v3")
    for k in range(4): g(f"v_pk_add_f32 {vr(VP+8+2*k,2)}, {vr(VP+8+2*k,2)}, {vr(VP+24+2*k,2)}")
    for k in range(4): g(f"v_pk_fma_f32 {vr(VP+2*k,2)}, {vr(VP+2*k,2)}, {vr(vSG,2)}, {vr(VP+8+2*k,2)} op_sel_hi:[1,0,1]")
    for k in range(4): g(f"v_pk_mul_f32 {vr(YP+2*k,2)}, {vr(YP+2*k,2)}, {vr(E+2*k,2)}")
    for k in range(4): g(f"v_pk_fma_f32 {vr(XU+2*k,2)}, {vr(VP+2*k,2)}, {vr(YP+2*k,2)}, {vr(XU+2*k,2)}")
    for k in range(4): g(f"v_cvt_pk_bf16_f32 v{XF+k}, v{XU+2*k}, v{XU+2*k+1}")
    g(f"buffer_store_dwordx4 {vr(XF,4)}, v{vFO}, {sr(SOUT,4)}, s{sB} offen {g.opt.get('outaux', 'sc1')}")
    if g.opt.get('stamps'):
        g(f"s_memtime s[6:7]\ns_waitcnt vmcnt(0)\ns_memtime s[8:9]\ns_memrealtime s[10:11]\ns_waitcnt lgkmcnt(0)")
        g(f"s_lshl3_add_u32 s{sT0}, s2, s{sV}\ns_lshl_b32 s{sT0}, s{sT0}, 7\ns_add_u32 s{sT0}, s{sT0}, {WS_STAMP}\ns_mov_b64 exec, 1")
        regs = [sSTAMP + 2 * k for k in range(12)] + [4, 6, 8, 10, 63]
        for k, s in enumerate(regs):
            g(f"v_mov_b32 v2, s{s}\nbuffer_store_dword v2, off, {sr(SWS,4)}, s{sT0} offset:{4*k}")
    if g.opt.get('probe'):
        if g.opt['probe'][1] == 'end': g(f"s_waitcnt vmcnt(0)\ns_memrealtime {sr(sSTAMP+2,2)}")
        g(f"s_waitcnt lgkmcnt(0)\ns_add_u32 s{sT0}, s{sSTAMP+2}, 4000\nL_probe:\ns_memrealtime s[4:5]\ns_waitcnt lgkmcnt(0)\ns_sub_u32 s6, s4, s{sT0}\ns_cmp_lt_i32 s6, 0\ns_cbranch_scc1 L_probe")
    g("L_end:\ns_endpgm")


HEAD = """; Fused layernorm + 2-D spectral filter + ReLU FFN gate, one persistent launch (256 workgroups, one per CU).
; @launch grid=(256,1,1) block=(512,1,1) lds=163840
"""

def build(opt):
    g = G(opt)
    prologue(g)
    n0 = g.nst; names0 = list(g.names)
    g.role = 'X'; role_x(g); nx = list(g.names)
    g.vmq = []; g.dsq = []; g.nst = n0; g.names = list(names0)
    g.role = 'Y'; role_y(g); ny = list(g.names)
    g.vmq = []; g.dsq = []
    final(g)
    body = pad_hazards(g.L)
    txt = HEAD + f'.amdgcn_target "amdgcn-amd-amdhsa--gfx950"\n.text\n.globl {KN}\n.p2align 8\n.type {KN},@function\n{KN}:\n'
    txt += "\n".join(l if l.endswith(':') else "    " + l for l in body) + "\n"
    txt += f""".section .rodata,"a"
.p2align 6
.amdhsa_kernel {KN}
  .amdhsa_next_free_vgpr 256
  .amdhsa_next_free_sgpr 102
  .amdhsa_accum_offset 256
  .amdhsa_group_segment_fixed_size 0
  .amdhsa_kernarg_size 72
  .amdhsa_user_sgpr_count 2
  .amdhsa_user_sgpr_kernarg_segment_ptr 1
  .amdhsa_system_sgpr_workgroup_id_x 1
.end_amdhsa_kernel
"""
    return txt, nx, ny

if __name__ == "__main__":
    import json
    out = sys.argv[1]
    opt = eval(sys.argv[2]) if len(sys.argv) > 2 else {}
    txt, nx, ny = build(opt)
    if opt.get('stamps'): txt += f"; STAMPS {json.dumps([nx, ny])}\n"
    open(out, "w").write(txt)
```

```python
import sys, struct
from asmtool import Prog, pad_hazards

KN = "recurrent_scan__spectral_gfnet__dense_activation_relu__prompt_kernel"

def fbits(x): return "0x%08x" % struct.unpack("<I", struct.pack("<f", x))[0]
def vr(b, n=1): return f"v{b}" if n == 1 else f"v[{b}:{b+n-1}]"
def sr(b, n=1): return f"s{b}" if n == 1 else f"s[{b}:{b+n-1}]"

FH, FW = 0, 4096
WS_Z, WS_U, WS_W2, WS_H, WS_END = 0x100000, 0x300000, 0x500000, 0x700000, 0x1000000
WS_STAMP = 0xE00000
TILE = 43 * 4096
XN = 0
SLOT0 = 65536
MISC = 151552
SYNC = 163776
CNT_H, CNT_W, WRD_H, PX, PY, WRD_W2 = 0, 4, 8, 16, 32, 48
YB0 = 65536
VREG = 114688
EAL = SLOT0 + 6 * 12288
def slot(c):
    if c < 7: return SLOT0 + 12288 * c
    if c < 12: return XN + 12288 * (c - 7)
    return SLOT0 + 12288 * (c - 12)
SX, SW1, SW2, SWS, SOUT, SDBG, SWW, SH, SW2P, SCODE = 24, 28, 32, 36, 40, 44, 48, 52, 56, 60
sV, sW, sRG1, sJ1, sROT, sRG2, sJ2, sFS, sFN = 64, 65, 66, 67, 68, 69, 70, 71, 72
sHI, sT0, sT1, sT2, sT3, sA, sB = 73, 74, 75, 76, 77, 22, 23
sONE, sRET = 10, 11
sSTAMP = 78
vL = 1
vME, vAL = 0, 8

MFMA = "v_mfma_f32_16x16x32_bf16"
DPP8 = "row_ror:8 row_mask:0xf bank_mask:0xf"

class G(Prog):
    def __init__(self, opt):
        super().__init__(); self.opt = opt; self.nst = 0; self.names = []; self.uid = 0; self.role = ''; self.tail = []; self.allnames = []; self.rec = None; self.atom = False; self.side = []
    def stamp(self, name):
        if self.opt.get('probe') == (self.role, name): self(f"s_memrealtime {sr(sSTAMP + 2, 2)}")
        if not self.opt.get('stamps'): return
        self.allnames.append((self.role, name))
        if name != 'start' and name not in self.opt['stamps'] and (self.role, name) not in self.opt['stamps']: return
        if self.nst >= 11: raise Exception("too many stamps")
        self(f"s_memtime {sr(sSTAMP + 2 + 2 * self.nst, 2)}"); self.nst += 1; self.names.append(name)
    def record(self, fn, name):
        self.rec = []; fn(); r = self.rec; self.rec = None
        self.side += r + [('done', name)]
    def __call__(self, t):
        if self.rec is None: return super().__call__(t)
        if self.atom: self.rec[-1][1].append(t)
        else: self.rec += [('op', l) for l in t.strip('\n').split('\n')]
    def atomic(self, on):
        if self.rec is not None and on: self.rec.append(('atom', []))
        self.atom = on
    def ds(self, t, tag='_'):
        if self.rec is None: return super().ds(t, tag)
        self.rec.append(('ds', t, tag))
    def wait(self, vm=None, ds=None):
        if self.rec is None: return super().wait(vm, ds)
        self.rec.append(('wait', vm, ds))
    def emit(self, n, seen):
        while self.side and (n > 0 or self.side[0][0] == 'done'):
            e = self.side.pop(0)
            if e[0] == 'op': self(e[1]); n -= 2 if e[1].startswith(('v_cos', 'v_sin')) else 1
            elif e[0] == 'atom':
                for t in e[1]: self(t)
                n -= 3
            elif e[0] == 'ds': self.ds(e[1], e[2]); n -= 1
            elif e[0] == 'wait': self.wait(e[1], e[2])
            else: seen.append(e[1])
    def lab(self, base):
        self.uid += 1; return f"L_{base}_{self.uid}"
    def mfma(self, d, a, b, first=False):
        self(f"{MFMA} {vr(d,4)}, {vr(a,4)}, {vr(b,4)}, {'0' if first else vr(d,4)}")
    def srd(self, d, b, n):
        self(f"s_mov_b32 s{d}, s{b}\ns_mov_b32 s{d+1}, s{b+1}\ns_mov_b32 s{d+2}, {n}\ns_mov_b32 s{d+3}, 0x20000")
    def bar(self): self("s_barrier")

    def trig(self, dcos, dsin, base, step, mults, t, negsin=False):
        def arg(e):
            for h in range(2):
                m = mults[2 * e + h]
                if m == 0: self(f"v_mov_b32 {vr(t+h)}, {vr(base)}")
                else: self(f"v_fmamk_f32 {vr(t+h)}, {vr(step)}, {fbits(float(m))}, {vr(base)}")
        arg(0)
        for e in range(4):
            self(f"v_cos_f32 {vr(t+2)}, {vr(t)}\nv_cos_f32 {vr(t+3)}, {vr(t+1)}")
            if dsin is not None:
                self(f"v_sin_f32 {vr(t+4)}, {vr(t)}\nv_sin_f32 {vr(t+5)}, {vr(t+1)}")
            if e < 3: arg(e + 1)
            self(f"v_cvt_pk_bf16_f32 {vr(dcos+e)}, {vr(t+2)}, {vr(t+3)}")
            if dsin is not None:
                n = '-' if negsin else ''
                self(f"v_cvt_pk_bf16_f32 {vr(dsin+e)}, {n}{vr(t+4)}, {n}{vr(t+5)}")

    def spin_global(self, load, reduce, vres, first_issued, want=1):
        top, chk, done = self.lab("sp"), self.lab("ck"), self.lab("dn")
        self(f"s_mov_b32 s{sT3}, 0")
        if first_issued: self(f"s_branch {chk}")
        self(f"{top}:")
        self(load)
        if first_issued != 'nowait': self(f"{chk}:")
        self("s_waitcnt vmcnt(0)")
        if first_issued == 'nowait': self(f"{chk}:")
        if reduce: self(reduce)
        self(f"v_cmp_gt_u32 vcc, {want}, {vr(vres)}\ns_add_u32 s{sT3}, s{sT3}, 1\ns_nop 0")
        self(f"s_cbranch_vccz {done}\ns_cmp_gt_u32 s{sT3}, 30000\ns_cbranch_scc1 {done}\ns_sleep {self.opt.get('sleep', 2)}\ns_branch {top}\n{done}:")
    def spin_lds(self, off, vaddr, vt):
        top, done = self.lab("ls"), self.lab("ld")
        self(f"s_mov_b32 s{sT3}, 0\n{top}:\nds_read_b32 {vr(vt)}, {vr(vaddr)} offset:{off}\ns_waitcnt lgkmcnt(0)")
        self(f"v_cmp_ne_u32 vcc, 1, {vr(vt)}\ns_add_u32 s{sT3}, s{sT3}, 1\ns_nop 0")
        self(f"s_cbranch_vccz {done}\ns_cmp_gt_u32 s{sT3}, 0x80000\ns_cbranch_scc1 {done}\ns_sleep 1\ns_branch {top}\n{done}:")
        self.dsq = []
    def s_add1(self, off, base=20):
        self(f"s_atomic_add s{sONE}, {sr(base,2)}, {off}")
    def spin_scalar(self, off, want, issued=False):
        top, done = self.lab("ss"), self.lab("sd")
        self(f"s_mov_b32 s{sT3}, 0")
        if issued: self(f"s_branch {top}_c")
        self(f"{top}:\ns_load_dword s{sRET}, s[20:21], {off} glc\n{top}_c:\ns_waitcnt lgkmcnt(0)\ns_cmp_ge_u32 s{sRET}, {want}")
        self(f"s_cbranch_scc1 {done}\ns_add_u32 s{sT3}, s{sT3}, 1\ns_cmp_gt_u32 s{sT3}, 30000\ns_cbranch_scc1 {done}\ns_sleep {self.opt.get('ssleep', 2)}\ns_branch {top}\n{done}:")
    def pub(self, val, role, vmine, vt):
        self(f"v_mov_b32 v{vt}, {val}")
        self.ds(f"ds_write_b32 v{vmine}, v{vt} offset:{role}")
    def poll(self, role, vall, vt, tag):
        self.ds(f"ds_read_b32 v{vt}, v{vall} offset:{role}", tag)
    def check(self, val, role, vall, vt, between=None, nosleep=False):
        slow, back = self.lab("slow"), self.lab("back")
        self(f"v_cmp_gt_u32 vcc, {val}, v{vt}")
        if between: between()
        else: self("s_nop 0")
        self(f"s_cbranch_vccnz {slow}\n{back}:")
        self.tail.append(f"""{slow}:
s_mov_b32 s{sT3}, 0
{slow}_l:
ds_read_b32 v{vt}, v{vall} offset:{role}
s_add_u32 s{sT3}, s{sT3}, 1
s_waitcnt lgkmcnt(0)
v_cmp_gt_u32 vcc, {val}, v{vt}
s_cmp_gt_u32 s{sT3}, 0x80000
s_cbranch_vccz {back}
s_cbranch_scc1 {back}
{'s_nop 0' if nosleep else 's_sleep 1'}
s_branch {slow}_l""")
    def need(self, val, role, vall, vt, nosleep=False):
        self.poll(role, vall, vt, "pl"); self.wait(ds="pl"); self.check(val, role, vall, vt, nosleep=nosleep)
    def set_flag(self, soff, vone, base_srd=SWS):
        self(f"s_mov_b64 exec, 1\nbuffer_store_dword {vr(vone)}, off, {sr(base_srd,4)}, {soff} sc1\ns_mov_b64 exec, -1")

    def ln_init(self, t):
        for k in range(4): self(f"v_mov_b32 v{t+k}, 0")
        self(f"s_mov_b32 s{sRET}, 0x3f803f80")
    def layernorm(self, h, R, Fp, t, vaddr, hook=lambda k: None):
        S0, Q0, RL_, RH, NB_ = t, t + 2, t + 4, t + 5, t + 6
        for i in range(8):
            self.wait(vm=f"x{h}{i}")
            for k in range(4):
                r = R + 4 * i + k
                self(f"v_dot2c_f32_bf16 v{S0+(k&1)}, s{sRET}, v{r}\nv_dot2c_f32_bf16 v{Q0+(k&1)}, v{r}, v{r}")
            hook(i)
        self(f"v_add_f32 v{S0}, v{S0}, v{S0+1}\nv_add_f32 v{Q0}, v{Q0}, v{Q0+1}")
        for mode in ("quad_perm:[1,0,3,2]", "quad_perm:[2,3,0,1]", "row_half_mirror"):
            self(f"v_add_f32_dpp v{S0}, v{S0}, v{S0} {mode} row_mask:0xf bank_mask:0xf")
            self(f"v_add_f32_dpp v{Q0}, v{Q0}, v{Q0} {mode} row_mask:0xf bank_mask:0xf")
        self(f"v_mul_f32 v{S0}, {fbits(-1/512)}, v{S0}\nv_mul_f32 v{Q0}, {fbits(1/512)}, v{Q0}")
        self(f"v_fma_f32 v{Q0}, -v{S0}, v{S0}, v{Q0}\nv_max_f32 v{Q0}, 0, v{Q0}")
        self(f"v_add_f32 v{Q0}, {fbits(1e-5)}, v{Q0}\nv_rsq_f32 v{Q0}, v{Q0}")
        self(f"v_cvt_pk_bf16_f32 v{RL_}, v{Q0}, 0\nv_lshlrev_b32 v{RH}, 16, v{RL_}\nv_mul_f32 v{NB_}, v{S0}, v{RH}")
        hook(8)
        def scale(i):
            for k in range(4):
                f = Fp + 8 * (i & 1) + 2 * k; r = R + 4 * i + k
                self(f"v_dot2_f32_bf16 v{f}, v{r}, v{RL_}, v{NB_}\nv_dot2_f32_bf16 v{f+1}, v{r}, v{RH}, v{NB_}")
        scale(0)
        for i in range(8):
            if i < 7: scale(i + 1)
            for k in range(4):
                f = Fp + 8 * (i & 1) + 2 * k
                self(f"v_cvt_pk_bf16_f32 v{R+4*i+k}, v{f}, v{f+1}")
            self.ds(f"ds_write_b128 {vr(vaddr)}, {vr(R+4*i,4)} offset:{2048*i}")
            hook(9 + i)

    def x_addr(self, voff, vlds, t):
        self(f"""
v_lshrrev_b32 {vr(t)}, 3, v{vL}
v_and_b32 {vr(t+1)}, 7, v{vL}
v_lshlrev_b32 {vr(voff)}, 16, {vr(t)}
v_lshl_or_b32 {vr(voff)}, {vr(t+1)}, 4, {vr(voff)}
v_xor_b32 {vr(t)}, {vr(t)}, {vr(t+1)}
v_lshlrev_b32 {vr(t)}, 4, {vr(t)}
v_lshl_or_b32 {vr(vlds)}, {vr(t+1)}, 8, {vr(t)}
s_and_b32 s{sT2}, s{sJ1}, {1 if self.opt.get('xswap', 1) else 0}
s_lshr_b32 s{sT0}, s{sV}, 2
s_xor_b32 s{sT2}, s{sT2}, s{sT0}
s_lshl_b32 s{sT0}, s{sW}, 14
s_lshl_b32 s{sT1}, s{sT2}, 7
s_add_u32 s{sT0}, s{sT0}, s{sT1}
v_add_u32 {vr(vlds)}, s{sT0}, {vr(vlds)}
s_and_b32 s{sT0}, s{sW}, 1
s_lshl1_add_u32 s{sT0}, s{sT0}, s{sT2}
s_lshl_b32 s{sA}, s{sT0}, 19
s_lshr_b32 s{sT0}, s{sW}, 1
s_lshl1_add_u32 s{sT0}, s{sRG1}, s{sT0}
s_lshl_b32 s{sT0}, s{sT0}, 10
s_add_u32 s{sA}, s{sA}, s{sT0}""")
    def x_load(self, h, R, voff):
        for i in range(8):
            if self.opt.get('rot', 0):
                self(f"s_add_u32 s{sT0}, s{sROT}, {i}\ns_and_b32 s{sT0}, s{sT0}, 7\ns_lshl_b32 s{sT0}, s{sT0}, 7\ns_add_u32 s{sT0}, s{sT0}, s{sA}")
                self.vm(f"buffer_load_dwordx4 {vr(R+4*i,4)}, {vr(voff)}, {sr(SX,4)}, s{sT0} offen", f"x{h}{i}")
            else:
                self.vm(f"buffer_load_dwordx4 {vr(R+4*i,4)}, {vr(voff)}, {sr(SX,4)}, s{sA} offen offset:{128*i}", f"x{h}{i}")


def prologue(g):
    g(f"""
s_cmp_ge_u32 s2, 256
s_cbranch_scc1 L_end
s_load_dwordx16 s[4:19], s[0:1], 0
s_load_dwordx2 s[20:21], s[0:1], 64""")
    if g.opt.get('stamps'):
        g(f"s_memrealtime {sr(sSTAMP,2)}"); g.stamp("start")
    if g.opt.get('probe'): g(f"s_memrealtime {sr(sSTAMP,2)}\ns_memrealtime {sr(sSTAMP+2,2)}")
    g(f"""
s_getpc_b64 s[{SCODE}:{SCODE+1}]
L_pc:
s_mov_b32 s{SCODE+2}, L_end-L_pc
s_mov_b32 s{SCODE+3}, 0x20000
v_lshrrev_b32 v2, 6, v0
v_lshlrev_b32 v3, 7, v2
s_lshr_b32 s3, s2, 3
s_lshl_b32 s{sT0}, s3, 10
buffer_load_dword v239, v3, {sr(SCODE,4)}, s{sT0} offen
v_readfirstlane_b32 s{sV}, v2
v_and_b32 v{vL}, 63, v0
s_and_b32 s{sT0}, s2, 3
s_lshl_b32 s{sT0}, s{sT0}, 3
s_bfe_u32 s{sT1}, s2, 0x10002
s_lshl_b32 s{sT1}, s{sT1}, 2
s_and_b32 s{sT2}, s3, 7
s_add_u32 s{sRG1}, s{sT0}, s{sT2}
s_lshr_b32 s{sT3}, s3, 3
s_add_u32 s{sJ1}, s{sT1}, s{sT3}
s_lshl1_add_u32 s{sROT}, s{sT3}, s{sT2}
s_bfe_u32 s{sT2}, s2, 0x10002
s_add_u32 s{sROT}, s{sROT}, s{sT2}
s_and_b32 s{sROT}, s{sROT}, {7 if g.opt.get('rot', 0) else 0}
s_add_u32 s{sRG2}, s{sT0}, s{sT1}
s_and_b32 s{sT2}, s3, 3
s_add_u32 s{sRG2}, s{sRG2}, s{sT2}
s_lshr_b32 s{sJ2}, s3, 2
s_mul_i32 s{sT0}, s{sJ1}, 43
s_lshr_b32 s{sFS}, s{sT0}, 3
s_add_u32 s{sT0}, s{sT0}, 43
s_lshr_b32 s{sT0}, s{sT0}, 3
s_sub_u32 s{sFN}, s{sT0}, s{sFS}
s_mov_b32 s{sHI}, 0xffff0000
s_and_b32 s{sW}, s{sV}, 3
s_mov_b32 s63, 0""")
    g(f"v_lshrrev_b32 v2, 4, v{vL}\nv_and_b32 v3, 15, v{vL}\nv_lshlrev_b32 v7, 4, v{vL}\nv_mov_b32 v6, 1")
    g(f"s_lshl2_add_u32 s{sT0}, s{sW}, {SYNC}\nv_mov_b32 v{vME}, s{sT0}\nv_and_b32 v{vAL}, 3, v{vL}\nv_lshlrev_b32 v{vAL}, 2, v{vAL}\nv_add_u32 v{vAL}, {SYNC}, v{vAL}")
    g.x_addr(4, 5, 248)
    g(f"s_cmp_ge_u32 s{sV}, 4\ns_cbranch_scc1 L_roleY")


def srds_common(g):
    g("s_waitcnt lgkmcnt(0)")
    g.srd(SX, 4, 2097152)
    g(f"s_mov_b32 s{sONE}, 1")
def srds_late(g):
    g.srd(SWS, 20, WS_END); g.srd(SOUT, 16, 2097152); g.srd(SDBG, 18, 256)
    g(f"""
s_mul_i32 s{sT0}, s{sJ2}, {TILE}
s_add_u32 s{sT0}, s{sT0}, {WS_W2}
s_add_u32 s{SW2P}, s20, s{sT0}
s_addc_u32 s{SW2P+1}, s21, 0
s_mov_b32 s{SW2P+2}, {TILE}
s_mov_b32 s{SW2P+3}, 0x20000""")

RING = [(0, 2), (3, 5), (6, 6), (7, 9), (10, 11), (12, 13), (14, 15)]


sP = 60

YSEQ = ("aw1 karg go x p2 zd apoi poiz poiu c0 ln prio2 +ea +a2 +bm0 +bm1 +bmx rl dbg c1 c2 c3 30 c4 30 c5 30 L2 fw w 30 pX2 30 L5 "
        "X2 c6 c7 c8 zs c9 30 L6 c10 30 c11 pX4 30 X4 c12 L9 wsync +wr +ws 30 c13 fwl 30 c14 L11 30 c15 30 fwc z L13 r0 ! L15 r1 X5 prio1 U "
        "r2 r3 X6 l0 l1 l2 l3 X7 r4 fhl r5 r6 fh")
XSEQ = "h0 h1 h2 h3 h4 h5 prio0 g0 g1 g2 g3 e0 e1 hf e2 e3 fa prio3 YU xf xw u"

def piece_off(g, d, t):
    g(f"v_lshrrev_b32 v{d}, 2, v{vL}\nv_lshlrev_b32 v{d}, 16, v{d}\nv_and_b32 v{t}, 3, v{vL}\nv_lshl_or_b32 v{d}, v{t}, 4, v{d}")

def z_base(g, d):
    g(f"""
s_and_b32 s{sT0}, s{sRG1}, 0x18
s_and_b32 s{sT1}, s{sRG1}, 1
s_lshl2_add_u32 s{sT0}, s{sT1}, s{sT0}
s_bfe_u32 s{sT1}, s{sRG1}, 0x20001
s_add_u32 s{sT0}, s{sT0}, s{sT1}
s_lshl_b32 s{sT0}, s{sT0}, 6
s_lshl2_add_u32 s{sT1}, s{sJ1}, s{sW}
s_lshl_b32 s{sT1}, s{sT1}, 11
s_add_u32 s{d}, s{sT0}, s{sT1}
s_add_u32 s{d}, s{d}, {WS_Z}""")

def poison(g, voff, t, sb):
    g(f"s_add_u32 s{sT0}, s{sb}, {16*65536}")
    g.vm(f"buffer_store_dwordx4 {vr(t,4)}, v{voff}, {sr(SWS,4)}, s{sb} offen sc1", "poi")
    g.vm(f"buffer_store_dwordx4 {vr(t,4)}, v{voff}, {sr(SWS,4)}, s{sT0} offen sc1", "poi")

def valid_loop(g, base, n, t, reload, cnt=None):
    chk, done = g.lab("vc"), g.lab("vd")
    g(f"s_mov_b32 s{sT3}, 0\n{chk}:")
    g(f"v_max_u32 v{t}, v{base}, v{base+1}")
    for k in range(2, n, 2): g(f"v_max3_u32 v{t}, v{base+k}, v{base+k+1}, v{t}")
    g(f"v_cmp_eq_u32 vcc, -1, v{t}\ns_add_u32 s{sT3}, s{sT3}, 1\ns_nop 0")
    g(f"s_cbranch_vccz {done}\ns_cmp_gt_u32 s{sT3}, 20000\ns_cbranch_scc1 {done}\ns_sleep {g.opt.get('vsleep', 4)}")
    if g.opt.get('stamps'): g(f"s_add_u32 s63, s63, 1")
    q = list(g.vmq); reload(); g.vmq = q
    g(f"s_waitcnt vmcnt(0)\ns_branch {chk}\n{done}:")

def ea_block(g, EA, G0, TMP, t0, t1):
    vQ, vN, vL16 = 2, 3, 7
    g(f"""
s_lshr_b32 s{t0}, s{sW}, 1
s_lshl1_add_u32 s{t0}, s{sRG1}, s{t0}
s_and_b32 s{t1}, s{sW}, 1
s_lshl_b32 s{t1}, s{t1}, 4
v_add_u32 v{TMP}, s{t1}, v{vN}
v_cvt_f32_u32 v{TMP}, v{TMP}
v_mul_f32 v{G0+7}, {fbits(1/32)}, v{TMP}
v_lshl_add_u32 v{TMP+1}, v{vQ}, 8, s{t0}
v_cvt_f32_u32 v{TMP+1}, v{TMP+1}
v_mul_f32 v{TMP+1}, {fbits(1/2048)}, v{TMP+1}
v_mul_f32 v{G0+6}, v{TMP}, v{TMP+1}""")
    g.trig(EA, EA + 4, G0 + 6, G0 + 7, [16 * (i >> 2) + (i & 3) for i in range(8)], G0)
    g(f"s_lshl_b32 s{t0}, s{sW}, 11\ns_add_u32 s{t0}, s{t0}, {EAL}\nv_add_u32 v{TMP}, s{t0}, v{vL16}")
    g.ds(f"ds_write_b128 v{TMP}, {vr(EA,4)}"); g.ds(f"ds_write_b128 v{TMP}, {vr(EA+4,4)} offset:1024")

def w2_dma(g, t):
    g(f"s_lshl_b32 s{sT0}, s{sW}, 14\ns_add_u32 m0, s{sT0}, {4096*t}\ns_add_u32 s{sT0}, s{sA}, {4096*(7+t)}")
    for b in range(4):
        g.vm(f"buffer_load_dwordx4 v7, {sr(SW2P,4)}, s{sT0} offen offset:{1024*b} sc1 lds", "w2l")


def role_x(g):
    o = g.opt
    XK, F, EA, AY, T, TMP = 16, 144, 176, 208, 224, 248
    vQ, vN, vXO, vXL, vONE, vL16 = 2, 3, 4, 5, 6, 7
    vRD = 10
    vB, vS = 14, 15
    G0 = 112
    g(f"s_setprio {o.get('xprio', 1)}")
    g(f"v_mov_b32 v{TMP}, 0\nv_lshlrev_b32 v{TMP+1}, 2, v{vN}\nv_add_u32 v{TMP+1}, {SYNC}, v{TMP+1}\nds_write_b32 v{TMP+1}, v{TMP}")
    def addrs():
        g(f"""
v_xor_b32 v{TMP}, v{vN}, v{vQ}
v_lshlrev_b32 v{TMP}, 4, v{TMP}
v_lshl_or_b32 v{TMP}, v{vQ}, 8, v{TMP}
s_lshr_b32 s{sT0}, s{sW}, 1
s_lshl_b32 s{sT0}, s{sT0}, 15
v_add_u32 v{vRD}, s{sT0}, v{TMP}
v_xor_b32 v{vRD+1}, 64, v{vRD}
v_xor_b32 v{vRD+2}, 0x8000, v{vRD}
v_xor_b32 v{vRD+3}, 0x8000, v{vRD+1}
v_lshrrev_b32 v{vS}, 5, v{vL}
v_mul_u32_u24 v{vS}, 3072, v{vS}
v_bfe_u32 v{TMP}, v{vL}, 2, 3
v_lshl_add_u32 v{vS}, v{TMP}, 7, v{vS}
v_and_b32 v{TMP}, 3, v{vL}
v_lshl_add_u32 v{vS}, v{TMP}, 3, v{vS}
v_bfe_u32 v{TMP}, v{vL}, 3, 2
v_lshl_add_u32 v{vS}, v{TMP}, 5, v{vS}
s_and_b32 s{sT0}, s{sW}, 1
s_lshl_b32 s{sT1}, s{sT0}, 6
s_lshl_b32 s{sT0}, s{sT0}, 10
v_xor_b32 v{vS}, s{sT1}, v{vS}
s_add_u32 s{sT1}, s{sT0}, {SLOT0}
v_add_u32 v{vWA}, s{sT1}, v{vS}
v_xor_b32 v{vWA+1}, 32, v{vWA}
v_xad_u32 v{vWA+2}, v{vWA}, 64, s{sT0}
v_xor_b32 v{vWA+3}, 32, v{vWA+2}""")
        g(f"s_lshr_b32 s{sT0}, s{sW}, 1\ns_lshl_b32 s{sT0}, s{sT0}, 12\ns_add_u32 s{sT0}, s{sT0}, {EAL}\nv_add_u32 v{vS}, s{sT0}, v{vL16}")
    vWA = 250
    if o.get('xaddr_pre', 0): addrs()
    srds_common(g)
    g.stamp("karg")
    g.x_load(0, XK, vXO)
    g.stamp("xiss")
    if not o.get('xaddr_pre', 0): addrs()
    srds_late(g)
    g(f"""
s_lshl_b32 s{sT0}, s{sJ1}, 5
s_add_u32 s{sT0}, s{sT0}, s{sW}
s_add_u32 s{sT0}, s{sT0}, 1
v_and_b32 v{TMP}, 7, v{vL}
v_lshl_add_u32 v{TMP}, v{TMP}, 2, s{sT0}
v_cvt_f32_u32 v{G0+7}, v{TMP}
v_mul_f32 v{G0+7}, {fbits(1/512)}, v{G0+7}
s_lshl_b32 s{sT0}, s{sROT}, 6
v_lshl_add_u32 v{TMP}, v{vQ}, 3, s{sT0}
v_cvt_f32_u32 v{TMP}, v{TMP}
v_bfe_u32 v9, v{vL}, 3, 1
v_cvt_f32_u32 v{TMP+1}, v9
v_mul_f32 v{TMP+1}, {fbits(0.25)}, v{TMP+1}
v_fma_f32 v{G0+6}, v{TMP}, v{G0+7}, v{TMP+1}
v_fract_f32 v{G0+6}, v{G0+6}""")
    goat = o.get('goat', 0)
    for u in range(5):
        if u == goat:
            g.bar()
            g.stamp("go")
        if u < 4: g.trig(F + 4 * u, None, G0 + 6, G0 + 7, [32 * u + i for i in range(8)], G0)
    g(f"v_mul_u32_u24 v{vB}, 0x8000, v9\nv_lshl_or_b32 v{vB}, v{vB}, 16, v{vB}")
    l1, l2 = g.lab("fo"), g.lab("fe")
    g(f"s_cmp_ge_u32 s{sW}, 2\ns_cselect_b32 s{sT0}, 0x80008000, 0\ns_bitcmp1_b32 s{sW}, 0\ns_cbranch_scc1 {l1}")
    g(f"v_xor_b32 v{TMP}, s{sT0}, v{vB}")
    for k in range(16): g(f"v_xor_b32_dpp v{F+16+k}, v{F+k}, v{TMP} {DPP8}")
    g(f"s_branch {l2}\n{l1}:\ns_xor_b32 s{sT0}, s{sT0}, 0x80008000")
    for k in range(16): g(f"v_xor_b32 v{F+16+k}, s{sT0}, v{F+k}")
    g(f"{l2}:")
    if o.get('ea_y', 1) == 0: ea_block(g, EA, G0, TMP, sT0, sT1)
    g.ln_init(T)
    g(f"s_and_b32 s{sT0}, s{sW}, 1\ns_cmp_eq_u32 s{sT0}, 0\ns_cselect_b32 s{sT2}, 0x80008000, 0")
    g(f"""
s_mul_i32 s{sT0}, s{sW}, 3072
s_add_u32 s{sT0}, s{sT0}, {slot(11)}
v_lshlrev_b32 v{vXO}, 6, v{vN}
v_lshl_or_b32 v{vXO}, v{vQ}, 4, v{vXO}
v_add_u32 v{vXO}, s{sT0}, v{vXO}
v_and_b32 v9, 7, v{vL}
v_lshlrev_b32 v9, 2, v9
v_add_u32 v9, {SYNC}, v9""")
    g.stamp("gen")
    g.layernorm(0, XK, XK + 64, T, vXL)
    g.pub(1, PX, vME, TMP)
    g(f"""
v_xor_b32 v{vXL}, 0x1000, v{vS}
s_mul_i32 s4, s{sRG1}, {TILE}
s_and_b32 s{sT0}, s{sW}, 1
s_mul_i32 s{sT0}, s{sT0}, 3
s_add_u32 s{sT1}, s{sT0}, s{sFS}
s_lshl_b32 s{sT1}, s{sT1}, 12
s_add_u32 s4, s4, s{sT1}
s_lshr_b32 s{sT1}, s{sW}, 1
s_lshl_b32 s{sT1}, s{sT1}, 11
s_add_u32 s4, s4, s{sT1}
s_add_u32 s4, s4, {WS_H}
s_add_u32 s5, s4, 4096
s_add_u32 s6, s4, 8192
s_add_u32 s{sT0}, s{sT0}, 2
s_cmp_lt_u32 s{sT0}, s{sFN}
s_cselect_b32 s6, s6, {WS_END}
s_mul_i32 s{sA}, s{sW}, {11*4096}""")
    g.stamp("ln")
    g.need(1, PX, 9, TMP)
    g(f"s_setprio {o.get('xprio2', 1)}")
    g.stamp("barA")
    def reg(t):
        u, b = divmod(t, 4)
        return XK + 8 * u + 4 * b if b < 2 else T + 8 * (u % 3) + 4 * (b - 2)
    def rd(t):
        if t < 64:
            u, b = divmod(t, 4)
            if t == 58 and o.get('ea_y', 1): g.poll(PY, vAL, TMP + 1, "pl")
            g.ds(f"ds_read_b128 {vr(reg(t),4)}, v{vRD+2*(b>>1)+(u&1)} offset:{16384*(b&1)+1024*u}", f"a{t}")
        elif t < 72:
            k = t - 64
            if k == 0 and o.get('ea_y', 1):
                g.stamp("pre0")
                g.wait(ds="pl"); g.check(o.get('ring', RING)[0][1] + 2, PY, vAL, TMP + 1)
                g.stamp("chk0")
            g.ds(f"ds_read_b128 {vr(EA+4*k,4)}, v{(vS, vXL)[k>>2]} offset:{1024*(k&3)}", f"a{t}")
    DA_ = 8
    for t in range(DA_): rd(t)
    for t in range(64):
        u, b = divmod(t, 4)
        if t % 2 == 0: g.wait(ds=f"a{t+1}")
        g.mfma(AY + 4 * b, reg(t), F + 4 * (u & 7), u == 0)
        rd(t + DA_)
        if 1 <= u <= 8 and t % 2 == 1:
            f = F + 4 * (u - 1) + (b & 2)
            g(f"v_xor_b32 v{f}, s{sT2}, v{f}\nv_xor_b32 v{f+1}, s{sT2}, v{f+1}")
    g.pub(2, PX, vME, TMP)
    if not o.get('ea_y', 1): g.poll(PY, vAL, TMP + 1, "pl")
    g.wait(ds="a71")
    g.stamp("barB")
    YF, YP, ZA, ZP = T, T + 8, F, T + 16
    for wh in range(2):
        for e in range(4):
            a = AY + 8 * wh + 2 * e
            g(f"v_cvt_pk_bf16_f32 v{YF+4*wh+e}, v{a}, v{a+1}")
    for wh in range(2):
        for kb in range(2): g.mfma(ZA + 8 * wh + 4 * kb, YF + 4 * wh, EA + 16 * wh + 8 * kb, True)
        for k in range(4): g(f"v_xor_b32_dpp v{YP+4*wh+k}, v{YF+4*wh+k}, v{vB} {DPP8}")
    for kb in range(2):
        for wh in range(2): g.mfma(ZA + 8 * wh + 4 * kb, YP + 4 * wh, EA + 16 * wh + 8 * kb + 4)
    AC, WF, NB, DEP = 160, 208, 8, o.get('dep', 6)
    assert DEP <= 6
    ring = o.get('ring', RING)
    needs = {6 * first: last + 2 for first, last in ring}
    if o.get('ea_y', 1): del needs[0]
    if o.get('nocheck'): needs = {}
    frees = {4 * 6: 4, 7 * 6: 5, 12 * 6: 6}
    PLEAD = o.get('plead', 4)
    base = [SLOT0]
    def rdw(t, i):
        c, fb = divmod(t, 6)
        if i == 0:
            if t in frees: g.pub(frees[t], PX, vME, TMP)
            if t + PLEAD in needs: g.poll(PY, vAL, TMP + 1, "pl")
            if t in needs:
                g.stamp(f"pre{c}")
                g.wait(ds="pl"); g.check(needs[t], PY, vAL, TMP + 1)
                g.stamp(f"chk{c}")
        off = slot(c) - base[0]
        if fb == 0 and (off < 0 or off + 7168 > 65535):
            for k in range(4): g(f"v_add_u32 v{vWA+k}, {off & 0xffffffff}, v{vWA+k}")
            base[0] = slot(c); off = 0
        g.ds(f"ds_read_b64_tr_b16 {vr(WF+4*(t%NB)+2*i,2)}, v{vWA+(fb&3)} offset:{off+6144*i+1024*(fb>>2)}", f"w{t}")
    g.poll(PX, vAL, 9, "px")
    for t in range(DEP): rdw(t, 0); rdw(t, 1)
    l1, l2 = g.lab("zs"), g.lab("ze")
    g(f"s_cmp_ge_u32 s{sW}, 2\ns_cbranch_scc1 {l1}")
    for k in range(8): g(f"v_cvt_pk_bf16_f32 v{ZP+k}, v{ZA+k}, v{ZA+8+k}")
    g(f"s_branch {l2}\n{l1}:")
    for k in range(8): g(f"v_cvt_pk_bf16_f32 v{ZP+k}, v{ZA+8+k}, v{ZA+k}")
    g(f"{l2}:")
    g.wait(ds="px"); g.check(2, PX, vAL, 9)
    for kb in range(2): g.ds(f"ds_write_b128 v{vXO}, {vr(ZP+4*kb,4)} offset:{1024*kb}")
    g.pub(3, PX, vME, TMP)
    g.stamp("zst")
    WE = o.get('we', 2)
    for t in range(96):
        if t % WE == 0: g.wait(ds=f"w{t+WE-1}")
        if t + DEP == 96: g.pub(7, PX, vME, TMP)
        u, fb = divmod(t, 6)
        for b in range(2):
            g.mfma(AC + 24 * b + 4 * fb, WF + 4 * (t % NB), XK + 8 * u + 4 * b, u == 0)
            if t + DEP < 96: rdw(t + DEP, b)
        if t % 12 == 11: g.stamp(f"t{t}")
    g.stamp("gemm1")
    HP = 16
    def hstore(k):
        ks, b = divmod(k, 2)
        d = HP + 4 * k; a = AC + 24 * b + 8 * ks
        for e in range(4): g(f"v_cvt_pk_bf16_f32 v{d+e}, v{a+2*e}, v{a+2*e+1}")
        for e in range(4): g(f"v_pk_max_i16 v{d+e}, v{d+e}, 0")
        g.vm(f"buffer_store_dwordx4 {vr(d,4)}, v{vL16}, {sr(SWS,4)}, s{4+ks} offen offset:{1024*b} sc1", "h")
    UF, GM, EM, DA, TF = 16, 80, 112, 144, 208
    def gen_g(db, u):
        g(f"""
s_lshl_b32 s{sT0}, s{sJ2}, 5
s_add_u32 s{sT0}, s{sT0}, {16*db}
v_add_u32 v{TMP}, s{sT0}, v{vN}
v_cvt_f32_u32 v{TMP}, v{TMP}
v_mul_f32 v{vS}, {fbits(1/128)}, v{TMP}
s_add_u32 s{sT0}, s{sW}, {128*u+1}
v_lshl_add_u32 v{TMP+1}, v{vQ}, 5, s{sT0}
v_cvt_f32_u32 v{TMP+1}, v{TMP+1}
v_mul_f32 v{TMP+1}, {fbits(1/512)}, v{TMP+1}
v_mul_f32 v{vB}, v{TMP}, v{TMP+1}""")
        e = GM + 16 * u + 8 * db
        g.trig(e, e + 4, vB, vS, list(range(8)), TMP)
    def gen_e(s2b, sb):
        g(f"""
s_lshl1_add_u32 s{sT0}, s{sRG2}, {1024*sb + s2b}
v_lshl_add_u32 v{TMP}, v{vN}, 6, s{sT0}
v_cvt_f32_u32 v{TMP}, v{TMP}
v_mul_f32 v{vS}, {fbits(1/512)}, v{TMP}
v_cvt_f32_u32 v{TMP+1}, v{vQ}
v_mul_f32 v{TMP+1}, {fbits(1/2048)}, v{TMP+1}
v_mul_f32 v{vB}, v{TMP}, v{TMP+1}""")
        e = EM + 16 * s2b + 8 * sb
        g.trig(e, e + 4, vB, vS, list(range(8)), TMP, negsin=True)
    def hflag():
        g.wait(vm="h")
        l = g.lab("hf")
        g(f"s_mov_b64 exec, 1\nds_add_rtn_u32 v{TMP}, v{vAL}, v{vONE} offset:{CNT_H}\ns_waitcnt lgkmcnt(0)\nv_cmp_eq_u32 vcc, 3, v{TMP}\ns_mov_b64 exec, -1")
        g(f"s_cbranch_vccz {l}\ns_lshl_b32 s{sT0}, s{sRG1}, 7\ns_add_u32 s{sT0}, s{sT0}, {FH}")
        g.s_add1(f"s{sT0}")
        g(f"{l}:")
    XR, vFO, vVA, vVR, vYA = 240, 10, 4, 11, 12
    def xfin():
        g(f"""
v_lshlrev_b32 v{vFO}, 16, v{vQ}
v_bfe_u32 v{TMP}, v{vL}, 3, 1
v_lshl_or_b32 v{vFO}, v{TMP}, 9, v{vFO}
v_and_b32 v{TMP}, 7, v{vL}
v_lshl_or_b32 v{vFO}, v{TMP}, 3, v{vFO}
s_lshl_b32 s8, s{sW}, 18
s_lshl_b32 s{sT0}, s{sRG2}, 11
s_add_u32 s8, s8, s{sT0}
s_lshl_b32 s{sT0}, s{sJ2}, 6
s_add_u32 s8, s8, s{sT0}
s_add_u32 s9, s8, {1 << 20}""")
        for mb in range(4):
            g.vm(f"buffer_load_dwordx2 {vr(XR+2*mb,2)}, v{vFO}, {sr(SX,4)}, s{8+(mb&1)} offen offset:{1024*(mb>>1)}", "xf")
    def uload(m0):
        for mp in range(m0, 4):
            g(f"s_add_u32 s{sT0}, s7, {4096*mp}")
            for k in range(4):
                g.vm(f"buffer_load_dwordx4 {vr(UF+16*mp+4*k,4)}, v{vL16}, {sr(SWS,4)}, s{sT0} offen offset:{1024*k} sc1", f"u{mp}")
    def u_first():
        g(f"s_lshl2_add_u32 s7, s{sRG2}, s{sW}\ns_lshl_b32 s7, s7, 14\ns_add_u32 s7, s7, {WS_U}")
        uload(0)
    def faddr():
        g(f"""
v_and_b32 v{TMP}, 7, v{vL}
v_xor_b32 v{TMP+1}, v{TMP}, v{vQ}
v_lshlrev_b32 v{TMP+1}, 4, v{TMP+1}
v_lshl_or_b32 v{TMP+1}, v{vN}, 7, v{TMP+1}
s_lshl_b32 s{sT0}, s{sW}, 13
s_add_u32 s{sT0}, s{sT0}, {VREG}
v_add_u32 v{vVA}, s{sT0}, v{TMP+1}
v_xor_b32 v{vVA+1}, 64, v{vVA}
s_lshl_b32 s{sT0}, s{sW}, 2
v_add_u32 v{TMP+1}, s{sT0}, v{vQ}
v_and_b32 v{TMP+2}, 7, v{TMP+1}
v_xor_b32 v{TMP}, v{TMP}, v{TMP+2}
v_lshlrev_b32 v{TMP}, 4, v{TMP}
v_lshl_or_b32 v{TMP}, v{TMP+1}, 7, v{TMP}
v_add_u32 v{vVR}, {VREG}, v{TMP}
v_xor_b32 v{TMP}, v{vN}, v{TMP+2}
v_lshlrev_b32 v{TMP}, 4, v{TMP}
v_lshl_or_b32 v{vYA+1}, v{TMP+1}, 8, v{TMP}
v_add_u32 v{vYA}, {YB0}, v{vYA+1}""")
    xs = []
    for it in o.get('xseq', XSEQ).split():
        if it[0] == 'h' and it[1:].isdigit(): hstore(int(it[1:]))
        elif it == 'hf':
            assert all(f"h{k}" in xs for k in range(6)); hflag()
        elif it[0] == 'g': gen_g(int(it[1]) >> 1, int(it[1]) & 1)
        elif it[0] == 'e': gen_e(int(it[1]) >> 1, int(it[1]) & 1)
        elif it == 'X6': g.need(6, PX, vAL, TMP)
        elif it == 'lw':
            g.wait(vm="w2l"); g(f"ds_write_b32 v{vME}, v{vONE} offset:{WRD_W2}")
        elif it[0] == 'l':
            assert 'X6' in xs and 'lw' not in xs; w2_dma(g, int(it[1]))
        elif it == 'xf': xfin()
        elif it == 'xw': g.wait(vm='xf')
        elif it == 'fa': faddr()
        elif it == 'u':
            assert all(f"h{k}" in xs for k in range(6)); u_first()
        elif it == 'YU': g.need(18, PY, vME, TMP)
        elif it.startswith('prio'): g(f"s_setprio {it[4:]}")
        else: raise Exception(it)
        if not it.startswith('prio'): g.stamp(it)
        xs.append(it)
    for x in ['hf', 'xf', 'fa', 'u'] + [f"{c}{k}" for c in 'ge' for k in range(4)]: assert x in xs, x
    g.x_l = [x for x in xs if x[0] == 'l' and x != 'lw']
    assert not g.x_l or 'lw' in xs
    def st1(mp):
        g.wait(vm=f"u{mp}")
        valid_loop(g, UF + 16 * mp, 16, 9, lambda: uload(mp))
        if mp == 0: g.stamp("u0")
        D = DA + 32 * (mp & 1)
        for u in range(2):
            for m in range(2):
                for db in range(2):
                    for cs in range(2):
                        g.mfma(D + 16 * m + 8 * db + 4 * cs, UF + 16 * mp + 8 * m + 4 * u, GM + 16 * u + 8 * db + 4 * cs, u == 0)
    def comb(mp):
        D = DA + 32 * (mp & 1)
        for m in range(2):
            for db in range(2):
                c, s = D + 16 * m + 8 * db, D + 16 * m + 8 * db + 4
                for s2b in range(2):
                    g(f"v_sub_f32 v{c+2*s2b}, v{c+2*s2b}, v{s+2*s2b+1}\nv_add_f32 v{s+2*s2b}, v{s+2*s2b}, v{c+2*s2b+1}")
        for s2b in range(2):
            for db in range(2):
                for part in range(2):
                    a = D + 8 * db + 4 * part + 2 * s2b
                    g(f"v_cvt_pk_bf16_f32 v{TF+16*s2b+8*db+4*part+mp}, v{a}, v{a+16}")
    st1(0)
    for mp in range(1, 4): st1(mp); comb(mp - 1)
    comb(3)
    VA = 16
    for part in range(2):
        for s2b in range(2):
            for sb in range(2):
                for db in range(2):
                    g.mfma(VA + 16 * s2b + 8 * sb + 4 * db, TF + 16 * s2b + 8 * db + 4 * part, EM + 16 * s2b + 8 * sb + 4 * part, part == 0)
    for mb in range(4):
        for db in range(2):
            g.ds(f"ds_write_b128 v{vVA+db}, {vr(VA+8*mb+4*db,4)} offset:{2048*mb}")
    g.pub(8, PX, vME, TMP)
    g.stamp("cdone")
    VP, S, XU, YP, E, OUT = 48, 112, 128, 144, 160, 176
    g(f"v_bfe_u32 v{vB}, v{vL}, 3, 1\nv_lshlrev_b32 v{vB}, 31, v{vB}\nv_xor_b32 v{vB}, 1.0, v{vB}\ns_mov_b32 s7, {fbits(2.0**19)}")
    g.wait(vm='xf')
    for k in range(8): g(f"v_lshlrev_b32 v{XU+2*k}, 16, v{XR+k}\nv_and_b32 v{XU+2*k+1}, s{sHI}, v{XR+k}")
    g.need(8, PX, vAL, TMP)
    for mb in range(4):
        for w in range(4):
            g.ds(f"ds_read_b128 {vr(VP+16*mb+4*w,4)}, v{vVR} offset:{8192*w+2048*mb}", f"v{mb}")
    for mb in range(4):
        g.wait(ds=f"v{mb}")
        v = VP + 16 * mb
        for k in range(2):
            g(f"v_pk_add_f32 {vr(v+2*k,2)}, {vr(v+2*k,2)}, {vr(v+8+2*k,2)}\nv_pk_add_f32 {vr(v+4+2*k,2)}, {vr(v+4+2*k,2)}, {vr(v+12+2*k,2)}")
        for k in range(2):
            g(f"v_pk_fma_f32 {vr(S+4*mb+2*k,2)}, {vr(v+2*k,2)}, {vr(vB,2)}, {vr(v+4+2*k,2)} op_sel_hi:[1,0,1]")
    g.stamp("sdone")
    g("s_setprio 3")
    for mb in range(4):
        g.need(19 + mb, PY, vAL, TMP, nosleep=(mb == 3))
        g.stamp(f"y{mb}")
        for w in range(4):
            if mb < 3: g.ds(f"ds_read_b128 {vr(YP+4*w,4)}, v{vYA} offset:{16384*mb+4096*w}", f"y{w}")
            else: g.ds(f"ds_read_b128 {vr(YP+4*w,4)}, v{vYA+1} offset:{16384*w}", f"y{w}")
        g.wait(ds="y1")
        for k in range(2): g(f"v_pk_add_f32 {vr(YP+2*k,2)}, {vr(YP+2*k,2)}, {vr(YP+4+2*k,2)}")
        g.wait(ds="y3")
        for k in range(2): g(f"v_pk_add_f32 {vr(YP+8+2*k,2)}, {vr(YP+8+2*k,2)}, {vr(YP+12+2*k,2)}")
        for k in range(2): g(f"v_pk_add_f32 {vr(YP+2*k,2)}, {vr(YP+2*k,2)}, {vr(YP+8+2*k,2)}")
        for k in range(4): g(f"v_mul_f32 v{E+k}, {fbits(-1.4426950408889634)}, v{YP+k}")
        for k in range(4): g(f"v_exp_f32 v{E+k}, v{E+k}")
        for k in range(2): g(f"v_pk_mul_f32 {vr(YP+2*k,2)}, {vr(YP+2*k,2)}, {vr(S+4*mb+2*k,2)}")
        for k in range(4): g(f"v_fma_f32 v{E+k}, v{E+k}, s7, s7")
        for k in range(4): g(f"v_rcp_f32 v{E+k}, v{E+k}")
        for k in range(2): g(f"v_pk_fma_f32 {vr(E+2*k,2)}, {vr(E+2*k,2)}, {vr(YP+2*k,2)}, {vr(XU+4*mb+2*k,2)}")
        for k in range(2): g(f"v_cvt_pk_bf16_f32 v{OUT+2*mb+k}, v{E+2*k}, v{E+2*k+1}")
        for m2 in {2: [0, 1, 2], 3: [3]}.get(mb, []):
            g(f"buffer_store_dwordx2 {vr(OUT+2*m2,2)}, v{vFO}, {sr(SOUT,4)}, s{8+(m2&1)} offen offset:{1024*(m2>>1)} {o.get('outaux', 'sc1')}")
    g("s_branch L_final")


def role_y(g):
    o = g.opt
    BM, R, TMP = 16, 80, 240
    vQ, vN, vXO, vXL, vONE, vL16, vSY = 2, 3, 4, 5, 6, 7, 13
    vW1 = 164
    vPO = 11
    vB, vS = 14, 15
    vC2, vWW, RL, WR, W2R = 148, 149, 152, 80, 192
    ZF, ZP, P, QF, QP, D, T2 = 112, 120, 128, 144, 152, 160, 176
    sC, sF = 61, 62
    g("L_roleY:")
    def a_w1():
        g(f"""
s_mul_i32 s{sC}, s{sW}, 3072
s_lshl_b32 s{sF}, s{sFS}, 6
s_and_b32 s{sT0}, s{sW}, 1
s_lshl_b32 s{sT0}, s{sT0}, 4
s_and_b32 s{sT1}, s{sW}, 2
s_lshl1_add_u32 s{sT0}, s{sT1}, s{sT0}
s_mul_i32 s{sT0}, s{sT0}, 2752
s_add_u32 s{sF}, s{sF}, s{sT0}
s_lshl_b32 s{sT1}, s{sFN}, 2
s_sub_u32 s{sT1}, s{sT1}, 16
v_lshrrev_b32 v{TMP}, 5, v{vL}
v_bfe_u32 v{TMP+1}, v{vL}, 3, 2
v_lshl_or_b32 v{TMP}, v{TMP}, 3, v{TMP+1}
v_mul_u32_u24 v{TMP}, 2752, v{TMP}
v_and_b32 v{TMP+1}, 7, v{vL}
v_lshlrev_b32 v{TMP+2}, 1, v{vQ}
v_xor_b32 v{TMP+1}, v{TMP+1}, v{TMP+2}
v_cmp_gt_u32 vcc, s{sT1}, v{TMP+1}
v_lshl_add_u32 v{vW1}, v{TMP+1}, 4, v{TMP}
v_cndmask_b32 v{vW1+1}, 2.0, v{vW1}, vcc""")
    def karg():
        srds_common(g)
        g.srd(SW1, 12, 512 * 2752); g.srd(SW2, 14, 1376 * 1024)
        srds_late(g)
        g(f"v_mov_b32 v{vSY}, {SYNC}\ns_mul_i32 s{sB}, s{sW}, 2560\ns_add_u32 s{sB}, s{sB}, {MISC}")
        lz = g.lab("nz")
        g(f"s_cmp_lg_u32 s2, 0\ns_cbranch_scc1 {lz}")
        for k in range(4): g(f"v_mov_b32 v{224+k}, 0")
        g(f"s_lshl_b32 s{sT0}, s{sW}, 11")
        for k in range(2): g(f"buffer_store_dwordx4 v[224:227], v7, {sr(SWS,4)}, s{sT0} offen offset:{1024*k} sc1")
        g(f"{lz}:")
        g.stamp("karg")
    def go():
        g.bar()
        g.stamp("go")
    def xl():
        g.x_load(0, R, vXO)
        g.stamp("xiss")
    def ln():
        g.ln_init(200)
        g.stamp("gen")
        g.layernorm(0, R, R + 32, 200, vXL, lambda k: [item(it) for it in o.get('yhook', {}).get(k, '').split()])
        g.pub(1, PY, vME, 10)
        g.stamp("ln")
    def zs():
        g.need(3, PX, vME, 163)
        g(f"s_add_u32 s{sT0}, s{sC}, {slot(11)}\nv_add_u32 v163, s{sT0}, v{vL16}")
        for t in range(2): g.ds(f"ds_read_b128 {vr(RL+4*t,4)}, v163 offset:{1024*t}", f"zs{t}")
        g(f"s_add_u32 s{sT0}, s3, {16*65536}")
        g.wait(vm='poi')
        for t in range(2):
            g.wait(ds=f"zs{t}")
            g.vm(f"buffer_store_dwordx4 {vr(RL+4*t,4)}, v{vPO}, {sr(SWS,4)}, {('s3', f's{sT0}')[t]} offen sc1", "zs")
        g.stamp("zs")
    def zd():
        lz = g.lab("nz")
        g(f"s_cmp_lg_u32 s2, 0\ns_cbranch_scc1 {lz}\ns_waitcnt vmcnt({len(g.vmq)})")
        g.s_add1("0", 18)
        g(f"{lz}:")
    def c2():
        g(f"v_lshrrev_b32 v{TMP}, 2, v{vL}\nv_and_b32 v{TMP+1}, 3, v{vL}\nv_lshlrev_b32 v{vC2}, 10, v{TMP}\nv_lshl_or_b32 v{vC2}, v{TMP+1}, 4, v{vC2}")
        g(f"v_lshlrev_b32 v12, 6, v{TMP}\nv_lshl_or_b32 v12, v{TMP+1}, 3, v12\nv_add_u32 v12, s{sB}, v12")
        g(f"""
s_lshr_b32 s{sT0}, s2, 2
s_lshl_b32 s{sT0}, s{sT0}, 15
s_and_b32 s{sT1}, s2, 3
s_lshl2_add_u32 s{sT1}, s{sT1}, s{sW}
s_lshl_b32 s{sT1}, s{sT1}, 6
s_add_u32 s{sT0}, s{sT0}, s{sT1}
s_mov_b32 m0, s{sB}""")
        g.vm(f"buffer_load_dwordx4 v{vC2}, {sr(SW2,4)}, s{sT0} offen lds", "c2")
        g(f"s_add_u32 s{sT0}, s{sT0}, {16384-1024}")
        g.vm(f"buffer_load_dwordx4 v{vC2}, {sr(SW2,4)}, s{sT0} offen offset:1024 lds", "c2")
    def apoi():
        piece_off(g, vPO, TMP)
        for k in range(4): g(f"v_mov_b32 v{144+k}, -1")
        z_base(g, 3)
        g(f"""
s_lshl_b32 s{sP}, s{sW}, 14
s_lshr_b32 s{sT0}, s{sRG2}, 2
s_lshl_b32 s{sT0}, s{sT0}, 11
s_add_u32 s{sP}, s{sP}, s{sT0}
s_and_b32 s{sT0}, s{sRG2}, 3
s_lshl2_add_u32 s{sT0}, s{sJ2}, s{sT0}
s_lshl_b32 s{sT0}, s{sT0}, 6
s_add_u32 s{sP}, s{sP}, s{sT0}
s_add_u32 s{sP}, s{sP}, {WS_U}""")
    def poiz(): poison(g, vPO, 144, 3)
    def poiu(): poison(g, vPO, 144, sP)
    dbgload = f"buffer_load_dword v160, off, {sr(SDBG,4)}, 0 sc1"
    def dbg(): g.vm(dbgload, "dbg")
    def rl():
        g.wait(vm="c2")
        for nbl in range(2):
            for i in range(2):
                g.ds(f"ds_read_b64_tr_b16 {vr(RL+4*nbl+2*i,2)}, v12 offset:{1024*i+32*nbl}", "rl")
        g(f"""
s_and_b32 s{sT0}, s2, 1
s_lshl2_add_u32 s{sT0}, s{sT0}, s{sW}
s_mul_i32 s{sT0}, s{sT0}, {TILE}
s_lshr_b32 s{sT1}, s2, 1
s_lshl_b32 s{sT1}, s{sT1}, 11
s_add_u32 s{sT0}, s{sT0}, s{sT1}
s_add_u32 s{sT0}, s{sT0}, {WS_W2}
s_cmp_lt_u32 s2, 172
s_cselect_b32 s{sT0}, s{sT0}, {WS_END}""")
        g.wait(ds="rl")
        for nbl in range(2):
            g.vm(f"buffer_store_dwordx4 {vr(RL+4*nbl,4)}, v{vL16}, {sr(SWS,4)}, s{sT0} offen offset:{1024*nbl} sc1", "rl")
    def chunk(c):
        g(f"s_lshl1_add_u32 s{sT0}, s{sROT}, {c}\ns_and_b32 s{sT0}, s{sT0}, 15\ns_mul_i32 s{sT0}, s{sT0}, {32*2752}\ns_add_u32 m0, s{sC}, {slot(c)}\ns_add_u32 s{sT0}, s{sT0}, s{sF}")
        for t in range(0 if o.get('nodma') else 3):
            if t: g(f"s_add_u32 m0, s{sC}, {slot(c) + 896*t}")
            g.vm(f"buffer_load_dwordx4 v{vW1+(t>>1)}, {sr(SW1,4)}, s{sT0} offen offset:{128*t} lds", f"c{c}_")
    def wtile():
        for t in range(3):
            g(f"""
v_add_u32 v{TMP}, {64*t}, v{vL}
v_mul_u32_u24 v{TMP+1}, 52429, v{TMP}
v_lshrrev_b32 v{TMP+1}, 18, v{TMP+1}
v_mul_u32_u24 v{TMP+1}, {16448-80}, v{TMP+1}
v_add_u32 v{vWW+t}, v{TMP+1}, v{vL16}""")
        g(f"""
s_cmp_ge_u32 s{sW}, 2
s_cselect_b32 s{SWW}, s8, s6
s_cselect_b32 s{SWW+1}, s9, s7
s_mov_b32 s{SWW+2}, {2048*514}
s_mov_b32 s{SWW+3}, 0x20000
s_mul_i32 s{sT0}, s{sRG2}, 514
s_add_u32 s{sT0}, s{sT0}, 2
s_and_b32 s{sT0}, s{sT0}, -16
s_lshl_b32 s{sT1}, s{sJ2}, 6
s_add_u32 s{sT0}, s{sT0}, s{sT1}
s_and_b32 s{sT1}, s{sW}, 1
s_mul_i32 s{sT1}, s{sT1}, {32*16448}
s_add_u32 s{sT0}, s{sT0}, s{sT1}
s_mov_b32 m0, s{sB}""")
        for t in range(3):
            if t == 2: g("s_mov_b32 exec_hi, 0")
            g.vm(f"buffer_load_dwordx4 v{vWW+t}, {sr(SWW,4)}, s{sT0} offen offset:{1024*t} lds", "ww")
        g("s_mov_b32 exec_hi, -1")
    def fw():
        g.wait(vm=['poi', 'rl', 'dbg'])
        g.spin_global(dbgload, None, 160, 'nowait', 4)
        l = g.lab("y1")
        g(f"s_mov_b64 exec, 1\nds_add_rtn_u32 v160, v{vSY}, v{vONE} offset:{CNT_W}\ns_waitcnt lgkmcnt(0)\nv_cmp_eq_u32 vcc, 3, v160\ns_mov_b64 exec, -1")
        g(f"s_cbranch_vccz {l}\ns_bfe_u32 s{sT0}, s2, 0x30003\ns_lshl_b32 s{sT0}, s{sT0}, 7\ns_add_u32 s{sT0}, s{sT0}, {FW}")
        g.s_add1(f"s{sT0}")
        g(f"{l}:")
        g.stamp("fw")
    fwload = f"buffer_load_dword v160, v161, {sr(SWS,4)}, 0 offen sc1"
    def fwl():
        g(f"v_and_b32 v161, 7, v{vL}\nv_lshlrev_b32 v161, 7, v161\nv_add_u32 v161, {FW}, v161")
        g.vm(fwload, "fwl")
    def fwc():
        g.wait(vm="fwl")
        g.spin_global(fwload, None, 160, 'nowait', 32)
        g.stamp("fwc")
    def bm_gen(mb):
        g(f"v_add_u32 v{T2+8}, {16*mb}, v{vN}\nv_cvt_f32_u32 v{T2+8}, v{T2+8}\nv_mul_f32 v{T2+7}, {fbits(1/64)}, v{T2+8}")
        g(f"v_cvt_f32_u32 v{T2+9}, v{vQ}\nv_mul_f32 v{T2+9}, 4.0, v{T2+9}\nv_mul_f32 v{T2+6}, v{T2+7}, v{T2+9}")
        g.trig(BM + 8 * mb, BM + 32 + 8 * mb, T2 + 6, T2 + 7, [16 * (i >> 2) + (i & 3) for i in range(8)], T2 + 8)
    def bm_xor():
        g(f"v_and_b32 v{T2+8}, 1, v{vL}\nv_mul_u32_u24 v{T2+8}, 0x8000, v{T2+8}\nv_lshl_or_b32 v{T2+8}, v{T2+8}, 16, v{T2+8}\ns_brev_b32 s12, 1")
        for cs in range(2):
            for mb in range(2):
                b = BM + 32 * cs + 8 * mb
                for k in range(4): g(f"v_xor_b32 v{b+4+k}, v{T2+8}, v{b+k}")
                for k in range(8): g(f"v_xor_b32 v{b+16+k}, s12, v{b+k}")
    def wread():
        g(f"""
v_mul_u32_u24 v12, 320, v{vQ}
v_and_b32 v{T2+8}, 7, v{vL}
v_lshl_add_u32 v12, v{T2+8}, 3, v12
s_lshl1_add_u32 s13, s{sRG2}, 2
s_and_b32 s13, s13, 15
s_lshl1_add_u32 s13, s{sW}, s13
s_add_u32 s13, s13, {MISC}
v_add_u32 v12, s13, v12""")
        for k in range(32):
            g.ds(f"ds_read_u16_d16_hi v{WR+k}, v12 offset:{5120*(k>>4) + 80*(16*((k>>2)&3) + (k&3))}", "wr")
    def wscale():
        g(f"""
v_bfe_u32 v{T2+8}, v{vL}, 3, 1
v_mul_u32_u24 v{T2+8}, 0x8000, v{T2+8}
v_lshl_or_b32 v{vB}, v{T2+8}, 16, v{T2+8}
v_xor_b32 v{vS}, 0x80008000, v{vB}
v_and_b32 v{T2+8}, 0x80000000, v{vS}""")
        g.wait(ds="wr")
        for k in range(16, 32): g(f"v_xor_b32 v{WR+k}, v{T2+8}, v{WR+k}")
        l = g.lab("ny")
        g.atomic(True)
        g(f"s_lshl2_add_u32 s12, s{sJ2}, s{sW}\ns_cmp_lg_u32 s12, 31\ns_cbranch_scc1 {l}\ns_mov_b32 exec_lo, 0x80808080\ns_mov_b32 exec_hi, 0x80808080")
        for k in range(32): g(f"v_mul_f32 v{WR+k}, 0.5, v{WR+k}")
        g(f"s_mov_b64 exec, -1\n{l}:")
        g.atomic(False)
    def a2():
        g(f"""
v_lshlrev_b32 v{T2+3}, 2, v{vL}
s_lshl2_add_u32 s12, s{sJ2}, s{sW}
s_lshl_b32 s14, s{sRG2}, 16
s_lshl_b32 s12, s12, 11
s_add_u32 s14, s14, s12
s_add_u32 s14, s14, {WS_Z}
s_mul_i32 s{sA}, s{sW}, {11*4096}
s_lshl_b32 s12, s{sW}, 13
s_add_u32 s12, s12, {VREG}
v_lshlrev_b32 v{T2}, 5, v{vN}
v_lshl_or_b32 v{T2}, v{vQ}, 3, v{T2}
v_add_u32 v{T2}, s12, v{T2}
v_add_u32 v{T2+1}, s12, v{vL16}
s_mul_i32 s12, s{sRG2}, {TILE}
s_add_u32 s12, s12, {WS_H}
s_mov_b32 s{SH+2}, {TILE}
s_mov_b32 s{SH+3}, 0x20000""")
        g.atomic(True); g(f"s_add_u32 s{SH}, s20, s12\ns_addc_u32 s{SH+1}, s21, 0"); g.atomic(False)
    w2reg = lambda t: 192 + 16 * t if t < 4 else 144 + 16 * (t - 4)
    def w2r(t):
        g(f"s_add_u32 s{sT0}, s{sA}, {4096*t}")
        for b in range(4):
            g.vm(f"buffer_load_dwordx4 {vr(w2reg(t)+4*b,4)}, v{vL16}, {sr(SW2P,4)}, s{sT0} offen offset:{1024*b} sc1", "w2r")
    def zload():
        for k in range(8):
            g.vm(f"buffer_load_dword v{ZF+k}, v{T2+3}, {sr(SWS,4)}, s14 offen offset:{256*k} sc1", "zl")
    def fh():
        l = g.lab("y0")
        g(f"s_cmp_lg_u32 s{sV}, 4\ns_cbranch_scc1 {l}")
        g(f"s_lshl_b32 s{sT0}, s{sRG2}, 7\ns_add_u32 s{sT0}, s{sT0}, {FH}")
        g.spin_scalar(f"s{sT0}", 8, 'fhl' in seen)
        g(f"ds_write_b32 v{vSY}, v{vONE} offset:{WRD_H}\n{l}:")
    def fhl():
        l = g.lab("y0")
        g(f"s_cmp_lg_u32 s{sV}, 4\ns_cbranch_scc1 {l}")
        g(f"s_lshl_b32 s{sT0}, s{sRG2}, 7\ns_add_u32 s{sT0}, s{sT0}, {FH}\ns_load_dword s{sRET}, s[20:21], s{sT0} glc\n{l}:")
    seq = o.get('yseq', YSEQ).split()
    seen = []
    simple = dict(ea=lambda: ea_block(g, 168, T2 + 6, T2 + 4, 12, 13), bm0=lambda: bm_gen(0), bm1=lambda: bm_gen(1), aw1=a_w1, karg=karg, fh=fh, fhl=fhl, go=go, x=xl, ln=ln, zs=zs, zd=zd, p2=c2, apoi=apoi, poiz=poiz, poiu=poiu, dbg=dbg, rl=rl, w=wtile, fw=fw, fwl=fwl, fwc=fwc,
                  bmx=bm_xor, wr=wread, ws=wscale, a2=a2, z=zload)
    pre = dict(w=['rl'], fw=['poiz', 'poiu', 'rl', 'dbg', 'go', 'zd'], a2=['x', 'karg'], ea=['karg'], zs=['poiz', 'rl', 'aw1'], ln=['x', 'go'], x=['karg'], z=['fwc', 'a2'], fwl=['fw'], fwc=['fwl'], wr=['wsync', 'ln'], ws=['wr'],
               rl=['p2'], poiz=['apoi'], poiu=['apoi'], p2=['karg'], bmx=['bm0', 'bm1'])
    def item(it):
        if it[0] == '+':
            for x in pre.get(it[1:], []): assert x in seen or x in queued, (it, x)
            g.record(simple[it[1:]], it[1:]); queued.append(it[1:]); return
        if it.isdigit(): g.emit(int(it), seen); return
        if it == '!': g.emit(10**6, seen); g.stamp(f"flush{len(seen)}"); return
        for x in pre.get(it, []): assert x in seen, (it, x)
        if it in simple: simple[it]()
        elif it.startswith('prio'): g(f"s_setprio {it[4:]}")
        elif it[0] == 'c':
            c = int(it[1:])
            assert 'aw1' in seen and 'karg' in seen and (c < 6 or 'X2' in seen) and (c != 11 or 'zs' in seen) and (c < 12 or 'X4' in seen)
            thr(3)
            chunk(c)
        elif it[0] == 'r':
            thr(4)
            assert 'fwc' in seen and 'a2' in seen and (int(it[1:]) < 4 or 'U' in seen)
            w2r(int(it[1:]))
        elif it[0] == 'l':
            thr(4)
            assert 'fwc' in seen and 'a2' in seen and 'X6' in seen
            w2_dma(g, int(it[1:]))
        elif it[:2] == 'pX':
            g.poll(PX, vAL, 9, "px")
        elif it[0] == 'L':
            c = int(it[1:])
            for k in range(c + 1): assert f"c{k}" in seen, (it, k)
            assert 'ln' in seen and (c < 15 or 'fwc' in seen) and ('ea' in seen) == bool(o.get('ea_y', 1))
            g.wait(vm=[f"c{k}_" for k in range(c + 1)])
            g.pub(c + 2, PY, vME, 10)
            if 'w' in seen and 'ww' not in g.vmq and 'wdone' not in seen: seen.append('wdone'); wd.append(c + 2)
            g.stamp(it)
        elif it[0] == 'X':
            if 'p' + it in seen: g.wait(ds="px"); g.check(int(it[1:]), PX, vAL, 9)
            else: g.need(int(it[1:]), PX, vAL, 9)
            g.stamp(it)
        elif it == 'wsync':
            g.need(wd[0] if not o.get("nodma") else 7, PY, vAL, 163)
        else: raise Exception(it)
        if not it.startswith('prio') and ('Y', it) not in g.allnames: g.stamp(it)
        seen.append(it)
    def thr(n):
        m = o.get('thr', 99) - n
        if len(g.vmq) > m and 'ln' in seen: g(f"s_waitcnt vmcnt({m})"); g.vmq = g.vmq[len(g.vmq) - m:]
    wd = []; queued = []
    cut = seq.index('U')
    for k in range(cut): item(seq[k])
    for x in ['ws', 'bmx', 'X5', 'z', 'L15']: assert x in seen, x
    seen.append('U')
    g.wait(vm="zl")
    valid_loop(g, ZF, 8, T2 + 2, zload)
    g.stamp("zld")
    for u in range(2):
        for mb in range(4):
            g.mfma(P + 4 * mb, BM + 8 * mb + 4 * u, ZF + 4 * u, u == 0)
            g(f"v_xor_b32_dpp v{ZP+4*u+mb}, v{ZF+4*u+mb}, v{vB} {DPP8}")
    for mb in range(4):
        for u in range(2): g.mfma(P + 4 * mb, BM + 32 + 8 * mb + 4 * u, ZP + 4 * u)
    for mb in range(4):
        for k in range(4 * mb, 4 * mb + 4): g(f"v_mul_f32 v{D+k}, v{P+k}, v{WR+k}")
        for k in range(4 * mb, 4 * mb + 4): g(f"v_fmac_f32_dpp v{D+k}, v{P+k}, v{WR+16+k} {DPP8}")
        for k in range(2 * mb, 2 * mb + 2): g(f"v_cvt_pk_bf16_f32 v{QF+k}, v{D+2*k}, v{D+2*k+1}")
    for u in range(2):
        for nb in range(4):
            g.mfma(P + 4 * nb, QF + 4 * u, BM + 8 * nb + 4 * u, u == 0)
            g(f"v_xor_b32_dpp v{QP+4*u+nb}, v{QF+4*u+nb}, v{vS} {DPP8}")
    for nb in range(4):
        for u in range(2): g.mfma(P + 4 * nb, QP + 4 * u, BM + 32 + 8 * nb + 4 * u)
    for nb in range(4):
        g(f"v_cvt_pk_bf16_f32 v{D+2*nb}, v{P+4*nb}, v{P+4*nb+1}\nv_cvt_pk_bf16_f32 v{D+2*nb+1}, v{P+4*nb+2}, v{P+4*nb+3}")
        g.ds(f"ds_write_b64 v{T2}, {vr(D+2*nb,2)} offset:{512*nb}")
    US = 80
    for t in range(2): g.ds(f"ds_read_b128 {vr(US+4*t,4)}, v{T2+1} offset:{1024*t}", f"b{t}")
    g(f"s_add_u32 s{sT2}, s{sP}, {16*65536}")
    for t in range(2):
        g.wait(ds=f"b{t}")
        g.vm(f"buffer_store_dwordx4 {vr(US+4*t,4)}, v{vPO}, {sr(SWS,4)}, s{(sP, sT2)[t]} offen sc1", "us")
    g.stamp("ust")
    g.pub(18, PY, vME, 10)
    g(f"""
s_lshl_b32 s{sT0}, s{sW}, 14
v_add_u32 v{vXO}, s{sT0}, v{vL16}
v_and_b32 v12, 7, v{vL}
v_xor_b32 v12, v12, v{vQ}
v_lshlrev_b32 v12, 4, v12
v_lshl_or_b32 v12, v{vN}, 8, v12
v_add_u32 v{vB}, s{sT0}, v12
v_xor_b32 v{vS}, 64, v{vB}
s_lshl_b32 s{sT0}, s{sW}, 12
s_add_u32 s{sT0}, s{sT0}, {YB0}
v_add_u32 v12, s{sT0}, v12
v_xor_b32 v{vXL}, 64, v12""")
    for k in range(cut + 1, len(seq)): item(seq[k])
    for x in [f"r{k}" for k in range(7)] + ['X7'] + [f"L{last}" for _, last in o.get('ring', RING)]: assert x in seen, x
    assert sorted(g.x_l + [x for x in seen if x[0] == 'l' and x != 'ln']) == ['l0', 'l1', 'l2', 'l3']
    assert 'fh' in seen
    g.spin_lds(WRD_H, vSY, 9)
    g(f"s_setprio {o.get('yprio', 1)}")
    g.stamp("hflag")
    AC, LF, HB, HD = 16, 48, 80, o.get('hd', 16)
    PO = [0, 1, 7, 2, 3, 8, 4, 9, 5, 10, 6]
    def hl(f):
        mb, p = divmod(f, 11)
        g(f"s_add_u32 s{sT0}, s{sA}, {4096*PO[p]}")
        g.vm(f"buffer_load_dwordx4 {vr(HB+4*(f%HD),4)}, v{vL16}, {sr(SH,4)}, s{sT0} offen offset:{1024*mb} sc1", f"h{f}")
    for f in range(HD): hl(f)
    if g.x_l: g.spin_lds(WRD_W2, vME, 9)
    def ywr(mb, nb):
        if mb < 3: g.ds(f"ds_write_b128 v{(12, vXL)[nb&1]}, {vr(AC+16*(mb&1)+4*nb,4)} offset:{16384*mb+128*(nb>>1)}")
        else: g.ds(f"ds_write_b128 v{(vB, vS)[nb&1]}, {vr(AC+16*(mb&1)+4*nb,4)} offset:{128*(nb>>1)}")
    for f in range(44):
        mb, p = divmod(f, 11)
        n = PO[p]
        g.wait(vm=f"h{f}", ds=(f"l{f}" if n >= 7 else None))
        if p == 0: g.stamp(f"pass{mb}")
        nx = PO[p + 2] if p + 2 < 11 else 0
        wf = w2reg(n) if n < 7 else LF + 16 * (n & 1)
        for nb in range(4):
            g.mfma(AC + 16 * (mb & 1) + 4 * nb, wf + 4 * nb, HB + 4 * (f % HD), p == 0)
            if nx >= 7: g.ds(f"ds_read_b128 {vr(LF+16*(nx&1)+4*nb,4)}, v{vXO} offset:{4096*(nx-7)+1024*nb}", f"l{f+2}")
        if f + HD < 44: hl(f + HD)
        if mb and p in (1, 2):
            ywr(mb - 1, 2 * p - 2); ywr(mb - 1, 2 * p - 1)
            if p == 2: g.pub(18 + mb, PY, vME, 10)
    g.stamp("g2done")
    for nb in range(4): ywr(3, nb)
    g.pub(22, PY, vME, 10)
    g.wait(ds='all')


def final(g):
    g("L_final:")
    if g.opt.get('stamps'):
        g(f"s_memtime s[4:5]\ns_memtime s[6:7]\ns_waitcnt vmcnt(0)\ns_memtime s[8:9]\ns_memrealtime s[10:11]\ns_waitcnt lgkmcnt(0)")
        g(f"s_lshl3_add_u32 s{sT0}, s2, s{sV}\ns_lshl_b32 s{sT0}, s{sT0}, 7\ns_add_u32 s{sT0}, s{sT0}, {WS_STAMP}\ns_mov_b64 exec, 1")
        regs = [sSTAMP + 2 * k for k in range(12)] + [4, 6, 8, 10, 63]
        for k, s in enumerate(regs):
            g(f"v_mov_b32 v2, s{s}\nbuffer_store_dword v2, off, {sr(SWS,4)}, s{sT0} offset:{4*k}")
    if g.opt.get('probe'):
        if g.opt['probe'][1] == 'end': g(f"s_waitcnt vmcnt(0)\ns_memrealtime {sr(sSTAMP+2,2)}")
        g(f"s_waitcnt lgkmcnt(0)\ns_add_u32 s{sT0}, s{sSTAMP+2}, 4000\nL_probe:\ns_memrealtime s[4:5]\ns_waitcnt lgkmcnt(0)\ns_sub_u32 s6, s4, s{sT0}\ns_cmp_lt_i32 s6, 0\ns_cbranch_scc1 L_probe")
    g("s_endpgm")
    for t in g.tail: g(t)
    g("L_end:\ns_endpgm")


HEAD = """; Fused layernorm + 2-D spectral filter + ReLU FFN gate, one persistent launch (256 workgroups, one per CU).
; @launch grid=(256,1,1) block=(512,1,1) lds=163840
"""

def build(opt):
    g = G(opt)
    prologue(g)
    n0 = g.nst; names0 = list(g.names); q0 = list(g.vmq)
    g.role = 'X'; role_x(g); nx = list(g.names)
    g.vmq = list(q0); g.dsq = []; g.nst = n0; g.names = list(names0)
    g.role = 'Y'; role_y(g); ny = list(g.names)
    g.vmq = []; g.dsq = []
    final(g)
    body = pad_hazards(g.L)
    txt = HEAD + f'.amdgcn_target "amdgcn-amd-amdhsa--gfx950"\n.text\n.globl {KN}\n.p2align 8\n.type {KN},@function\n{KN}:\n'
    txt += "\n".join(l if l.endswith(':') else "    " + l for l in body) + "\n"
    txt += f""".section .rodata,"a"
.p2align 6
.amdhsa_kernel {KN}
  .amdhsa_next_free_vgpr 256
  .amdhsa_next_free_sgpr 102
  .amdhsa_accum_offset 256
  .amdhsa_group_segment_fixed_size 0
  .amdhsa_kernarg_size 72
  .amdhsa_user_sgpr_count 2
  .amdhsa_user_sgpr_kernarg_segment_ptr 1
  .amdhsa_system_sgpr_workgroup_id_x 1
.end_amdhsa_kernel
"""
    build.allnames = g.allnames
    return txt, nx, ny

if __name__ == "__main__":
    import json
    out = sys.argv[1]
    opt = eval(sys.argv[2]) if len(sys.argv) > 2 else {}
    txt, nx, ny = build(opt)
    if opt.get('stamps'): txt += f"; STAMPS {json.dumps([nx, ny])}\n"
    open(out, "w").write(txt)
```
